```python
import torch

def _softmax(x, axis=-1):
    return torch.softmax(x, dim=axis)

def _gelu(x):
    return torch.nn.functional.gelu(x, approximate='tanh')

def _silu(x):
    return torch.nn.functional.silu(x)

def _sigmoid(x):
    return torch.sigmoid(x)

def _layernorm(x, axis=-1, eps=1e-05):
    m = x.mean(dim=axis, keepdim=True)
    v = x.var(dim=axis, keepdim=True, unbiased=False)
    return (x - m) / torch.sqrt(v + eps)

def _scatter_add(tgt, idx, src, axis=0):
    return tgt.clone().index_add_(axis, idx, src)

def _segment_sum(src, seg, n):
    out = torch.zeros((n,) + src.shape[1:], dtype=src.dtype)
    return out.index_add_(0, seg, src)

def _pad(x, pw):
    flat = tuple((v for pair in reversed(pw) for v in pair))
    return torch.nn.functional.pad(x, flat)
kernel_name = 'gated_mix__mha_block__memory_aug_recurrent_mem_tr__prompt'

def setup_inputs():

    _w = lambda a: (lambda t: t.to(torch.bfloat16) if t.is_floating_point() else t)(torch.as_tensor(a))

    def _A_setup():
        B, S, D, H = (1, 2048, 512, 32)
        return {'x': _w((lambda *s: torch.randn(*s, dtype=torch.bfloat16) * 0.05)(B, S, D)), 'wqkv': _w((lambda *s: torch.randn(*s, dtype=torch.bfloat16) * 0.8)(D, 3 * D)), 'wo': _w((lambda *s: torch.randn(*s, dtype=torch.bfloat16) * 0.05)(D, D))}
    _A_in = _A_setup()

    def _B_setup():
        B, S, Dm = (1, 2048, 512)
        H, Dh = (32, 128)
        M, seg = (8, 32)
        seg = min(seg, S)
        S = S // seg * seg
        return {'x': _w((lambda *s: torch.randn(*s, dtype=torch.bfloat16) * 0.05)(B, S, Dm)), 'mem0': _w((lambda *s: torch.randn(*s, dtype=torch.bfloat16) * 0.8)(B, M, Dm)), 'Wq': _w((lambda *s: torch.randn(*s, dtype=torch.bfloat16) * 1.6)(Dm, H, Dh) * Dm ** (-0.5)), 'Wk': _w((lambda *s: torch.randn(*s, dtype=torch.bfloat16) * 1.6)(Dm, H, Dh) * Dm ** (-0.5)), 'Wv': _w((lambda *s: torch.randn(*s, dtype=torch.bfloat16) * 0.8)(Dm, H, Dh) * Dm ** (-0.5)), 'Wo': _w((lambda *s: torch.randn(*s, dtype=torch.bfloat16) * 0.8)(H, Dh, Dm) * (H * Dh) ** (-0.5)), 'seg_len': seg}
    _B_in = _B_setup()
    return {'A_x': _A_in['x'], 'A_wqkv': _A_in['wqkv'], 'A_wo': _A_in['wo'], 'B_x': _B_in['x'], 'B_mem0': _B_in['mem0'], 'B_Wq': _B_in['Wq'], 'B_Wk': _B_in['Wk'], 'B_Wv': _B_in['Wv'], 'B_Wo': _B_in['Wo'], 'B_seg_len': _B_in['seg_len'], 'gate_w': _w((lambda *s: torch.randn(*s, dtype=torch.bfloat16) * 0.05)(512) * 16.0)}

def reference(A_x, A_wqkv, A_wo, B_x, B_mem0, B_Wq, B_Wk, B_Wv, B_Wo, B_seg_len, gate_w):

    def _A_ref(x, wqkv, wo):
        B, S, D = x.shape
        H = 32
        Dh = D // H
        qkv = (lambda x, *d: x.permute(*d))((x @ wqkv).reshape(B, S, 3, H, Dh), 2, 0, 3, 1, 4)
        q, k, v = (qkv[0], qkv[1], qkv[2])
        scores = torch.einsum('bhqd,bhkd->bhqk', q, k) * Dh ** (-0.5)
        p = _softmax(scores, axis=-1)
        o = torch.einsum('bhqk,bhkd->bhqd', p, v)
        return (lambda x, *d: x.permute(*d))(o, 0, 2, 1, 3).reshape(B, S, D) @ wo

    def _B_ref(x, mem0, Wq, Wk, Wv, Wo, seg_len):
        B, S, Dm = x.shape
        H, Dh = (Wq.shape[1], Wq.shape[2])
        M = mem0.shape[1]
        scale = Dh ** (-0.5)
        n_seg = S // seg_len
        L = M + seg_len
        idx = torch.arange(L)
        mask = (idx[:, None] < M) | (idx[:, None] >= idx[None, :])
        mem = mem0
        outs = []
        for s in range(n_seg):
            xs = x[:, s * seg_len:(s + 1) * seg_len, :].clone()
            h = torch.concatenate([mem, xs], axis=1)
            q = torch.einsum('btd,dhe->bhte', h, Wq)
            k = torch.einsum('btd,dhe->bhte', h, Wk)
            v = torch.einsum('btd,dhe->bhte', h, Wv)
            scores = torch.einsum('bhqe,bhke->bhqk', q, k) * scale
            scores = torch.where(mask[None, None], scores, -1000000000.0)
            p = _softmax(scores, axis=-1)
            o = torch.einsum('bhqk,bhke->bhqe', p, v)
            o = torch.einsum('bhte,hed->btd', o, Wo)
            mem = o[:, :M, :].clone()
            outs.append(o[:, M:, :])
        return torch.concatenate(outs, axis=1)
    x = A_x
    g = _sigmoid((x * gate_w).sum(-1, keepdims=True))
    a = _A_ref(x, A_wqkv, A_wo)
    b = _B_ref(x, B_mem0, B_Wq, B_Wk, B_Wv, B_Wo, B_seg_len)
    return g * a + (1 - g) * b
```

```python
class Asm:
    def __init__(s):
        s.L = []; s.dq = []; s.vq = []; s.nl = 0
    def __call__(s, txt):
        for l in txt.strip().split('\n'):
            l = l.strip()
            if l: s.L.append(l)
    def lab(s, p='L'):
        s.nl += 1; return f'{p}_{s.nl}'
    def ds(s, txt, tag=None):
        s(txt); s.dq.append(tag)
    def vm(s, txt, tag=None):
        s(txt); s.vq.append(tag)
    def _w(s, q, tags, mx):
        idx = -1
        for i, t in enumerate(q):
            if t in tags: idx = i
        if idx < 0: return None
        n = len(q) - 1 - idx
        n = min(n, mx)
        del q[:len(q) - n]
        return n
    def wl(s, *tags):
        n = s._w(s.dq, tags, 15)
        if n is not None: s(f's_waitcnt lgkmcnt({n})')
    def wv(s, *tags):
        n = s._w(s.vq, tags, 63)
        if n is not None: s(f's_waitcnt vmcnt({n})')
    def wl0(s):
        s('s_waitcnt lgkmcnt(0)'); s.dq = []
    def wv0(s):
        s('s_waitcnt vmcnt(0)'); s.vq = []
    def w0(s):
        s('s_waitcnt vmcnt(0) lgkmcnt(0)'); s.vq = []; s.dq = []
    def text(s):
        return '\n'.join(s.L) + '\n'

def vr(b, n=1, p='v'):
    return f'{p}{b}' if n == 1 else f'{p}[{b}:{b+n-1}]'
def ar(b, n=1):
    return vr(b, n, 'a')
def sr(b, n=1):
    return vr(b, n, 's')

KVF, KMF, PF, AF = 0x0, 0x2000, 0x4000, 0x6000
FLG_BYTES = 0x8000
TIM = 0x8000
HOP2, HOP1 = 0x10000, 0x40000
KM = 0x100000
AKV = 0x900000
KVX = 0x1000000
PART = 0x3000000
WS_BYTES = 0x10000000
D_TEAM, D_INIT = 4, 192
S_X, S_WQKV, S_WOA, S_MEM0, S_WQ, S_WK, S_WV, S_WO, S_GATE, S_OUT, S_DBG, S_WS = 8, 10, 12, 16, 18, 20, 22, 24, 28, 30, 32, 34
R_WS, R_DBG, R_A, R_B = 36, 40, 44, 48
S_W, S_SLOT, S_XCC, S_T0, S_T1, S_T2, S_T3, S_SPIN = 3, 4, 5, 52, 53, 54, 55, 56
S_LO, S_HI = 57, 58
SPIN_MAX = 1 << 19

def srd(a, r, p, n):
    a(f's_mov_b32 s{r}, s{p}\ns_mov_b32 s{r+1}, s{p+1}\ns_mov_b32 s{r+2}, {n}\ns_mov_b32 s{r+3}, 0x20000')

def spin(a, back):
    a(f's_sub_u32 s{S_SPIN}, s{S_SPIN}, 1\ns_cmp_lg_u32 s{S_SPIN}, 0\ns_cbranch_scc1 {back}\ns_endpgm')

def prologue(a):
    a(f'''s_cmp_ge_u32 s2, 256
    s_cbranch_scc0 L_go
    s_endpgm
    L_go:
    s_load_dwordx16 s[8:23], s[0:1], 0
    s_load_dwordx8 s[24:31], s[0:1], 64
    s_load_dwordx4 s[32:35], s[0:1], 96
    s_getreg_b32 s{S_XCC}, hwreg(HW_REG_XCC_ID)
    v_lshrrev_b32 v1, 6, v0
    v_and_b32 v0, 63, v0
    s_and_b32 s{S_XCC}, s{S_XCC}, 7
    v_readfirstlane_b32 s{S_W}, v1
    s_mov_b32 s{S_SPIN}, {SPIN_MAX}
    s_mov_b32 s{S_LO}, 0x05040100
    s_mov_b32 s{S_HI}, 0x07060302
    s_lshl_b32 s{S_T0}, s{S_XCC}, 2
    s_add_u32 s{S_T0}, s{S_T0}, 128
    s_cmp_eq_u32 s{S_XCC}, 0
    s_cselect_b32 s{S_T0}, 0, s{S_T0}
    s_waitcnt lgkmcnt(0)''')
    srd(a, R_WS, S_WS, WS_BYTES); srd(a, R_DBG, S_DBG, 256)
    a(f'''s_cmp_lg_u32 s{S_W}, 0
    s_cbranch_scc1 L_rank_wait
    s_mov_b32 s{S_SLOT}, 1
    s_atomic_add s{S_SLOT}, s[{S_DBG}:{S_DBG+1}], s{S_T0} glc
    s_waitcnt lgkmcnt(0)
    s_cmp_lt_u32 s{S_SLOT}, 32
    s_cbranch_scc0 L_overflow
    s_lshl_b32 s{S_T0}, s{S_XCC}, 5
    s_add_u32 s{S_SLOT}, s{S_SLOT}, s{S_T0}
    L_have_slot:
    v_mov_b32 v1, 0
    v_mov_b32 v2, s{S_SLOT}
    ds_write_b32 v1, v2
    s_waitcnt lgkmcnt(0)
    L_rank_wait:
    s_barrier
    v_mov_b32 v1, 0
    ds_read_b32 v2, v1
    s_waitcnt lgkmcnt(0)
    v_readfirstlane_b32 s{S_SLOT}, v2
    s_barrier''')

def overflow(a):
    a(f'''L_overflow:
    v_lshlrev_b32 v1, 2, v0
    v_add_u32 v1, 128, v1
    v_cmp_eq_u32 vcc, 0, v0
    s_nop 1
    v_cndmask_b32 v1, v1, 0, vcc
    L_ovf_poll:
    buffer_load_dword v2, v1, s[{R_DBG}:{R_DBG+3}], 0 offen sc0 sc1
    s_waitcnt vmcnt(0)
    s_mov_b32 s{S_T0}, 0''')
    for y in range(8):
        a(f'v_readlane_b32 s{60+y}, v2, {y}')
    for y in range(8):
        a(f's_add_u32 s{S_T0}, s{S_T0}, s{60+y}')
    a(f's_cmp_eq_u32 s{S_T0}, 256\ns_cbranch_scc1 L_ovf_all')
    spin(a, 'L_ovf_poll')
    a(f'L_ovf_all:\ns_sub_u32 s{S_SLOT}, s{S_SLOT}, 32')
    for y in range(7):
        a(f'''s_max_u32 s{S_T0}, s{60+y}, 32
        s_sub_u32 s{S_T0}, s{S_T0}, 32
        s_cmp_gt_u32 s{S_XCC}, {y}
        s_cselect_b32 s{S_T0}, s{S_T0}, 0
        s_add_u32 s{S_SLOT}, s{S_SLOT}, s{S_T0}''')
    for y in range(8):
        a(f'''s_min_u32 s{S_T0}, s{60+y}, 32
        s_sub_u32 s{S_T1}, 32, s{S_T0}
        s_add_u32 s{S_T2}, s{S_T0}, {32*y}
        s_cmp_lt_u32 s{S_SLOT}, s{S_T1}
        s_cbranch_scc1 L_ovf_found
        s_sub_u32 s{S_SLOT}, s{S_SLOT}, s{S_T1}''')
    a(f'''s_endpgm
    L_ovf_found:
    s_add_u32 s{S_SLOT}, s{S_SLOT}, s{S_T2}
    s_branch L_have_slot''')

def wait_init(a):
    l = a.lab('L_init')
    a(f'''v_mov_b32 v1, {D_INIT}
    {l}:
    buffer_load_dword v2, v1, s[{R_DBG}:{R_DBG+3}], 0 offen sc0 sc1
    s_waitcnt vmcnt(0)
    v_readfirstlane_b32 s{S_T0}, v2
    s_cmp_lg_u32 s{S_T0}, 0
    s_cbranch_scc1 {l}_ok''')
    spin(a, l)
    a(f'{l}_ok:')
    a.vq = []
```

```python
from ga import *
L_MEM, L_KX, L_QK, L_SEL, L_O, L_W = 0, 8192, 24576, 29184, 30208, 32768
MA, SB, QA, VA, VB, ON, VX, WV = 0, 32, 64, 80, 88, 104, 112, 128
vIDX, vAA, vL16, vSB, vQW, vQR, vKR, vOW = range(120, 128)
vH1S, vH2S, vM1, vM3, vMW, vT8 = 91, 95, 99, 103, 107, 111
sH, sS, sKV, sKM, sH1L, sH1S, sH2, sRDY, sODD, sX2, sC, sFL, sKXM, sKE = 60, 61, 62, 63, 64, 65, 66, 68, 70, 72, 74, 75, 76, 67
WS = f's[{R_WS}:{R_WS+3}]'
PROF = 78

def drow(ks, hi, r):
    return 64*ks + 32*hi + 8*(r & 1) + 2*(r >> 1)

def smf(d, A, B, abid=0):
    return f'v_smfmac_f32_16x16x64_bf16 {vr(d,4)}, {vr(A,4)}, {B}, v{vIDX}' + (' abid:1' if abid else '')

def r_setup(a):
    a(f's_mov_b32 s{sH}, s{S_SLOT}')
    a(f'''v_and_b32 v1, 15, v0
    v_lshrrev_b32 v2, 4, v0
    v_lshlrev_b32 v{vL16}, 4, v0
    s_lshl_b32 s{S_T0}, s{S_W}, 11
    v_add_u32 v{vMW}, s{S_T0}, v{vL16}
    s_lshl_b32 s{S_T0}, s{S_W}, 15
    s_add_u32 s{S_T0}, s{S_T0}, {L_W}
    v_add_u32 v{vSB}, s{S_T0}, v{vL16}
    v_lshrrev_b32 v3, 1, v2
    v_and_b32 v4, 1, v2
    v_lshlrev_b32 v5, 4, v3
    v_lshl_add_u32 v5, v4, 2, v5''')
    a(f'''s_lshl_b32 s{S_T0}, s{sH}, 8
    s_and_b32 s{S_T1}, s{S_W}, 1
    s_lshl_b32 s{S_T1}, s{S_T1}, 7
    s_add_u32 s{S_T1}, s{S_T1}, s{S_T0}
    v_lshlrev_b32 v6, 13, v5
    v_lshl_add_u32 v116, v1, 3, v6
    v_add_u32 v116, s{S_T1}, v116
    s_lshl_b32 s{S_T1}, s{S_W}, 6
    s_add_u32 s{S_T1}, s{S_T1}, s{S_T0}
    v_lshl_add_u32 v117, v1, 2, v6
    v_add_u32 v117, s{S_T1}, v117
    s_lshl_b32 s{S_T0}, s{sH}, 17
    s_lshl_b32 s{S_T1}, s{S_W}, 8
    s_add_u32 s{S_T1}, s{S_T1}, s{S_T0}
    v_lshlrev_b32 v6, 10, v5
    v_lshl_add_u32 v118, v1, 4, v6
    v_add_u32 v118, s{S_T1}, v118
    s_cmp_lt_u32 s{S_W}, 2
    s_cselect_b32 s{R_A}, s{S_WQ}, s{S_WK}
    s_cselect_b32 s{R_A+1}, s{S_WQ+1}, s{S_WK+1}
    s_mov_b32 s{R_A+2}, {512*8192}
    s_mov_b32 s{R_A+3}, 0x20000''')
    srd(a, R_B, S_WV, 512*8192)
    a(f'''s_lshl_b32 s{sH1L}, s{sH}, 13
    s_add_u32 s{sH1L}, s{sH1L}, {HOP1}
    s_lshl_b32 s{sH1S}, s{sH}, 6
    s_add_u32 s{sH1S}, s{sH1S}, {HOP1}
    s_mov_b32 s{sH2}, {HOP2}
    s_lshl_b32 s{S_T0}, s{sH}, 2
    s_add_u32 s{S_T0}, s{S_T0}, s{S_W}
    s_lshl_b32 s{S_T0}, s{S_T0}, 6
    v_and_b32 v6, 3, v1
    v_lshlrev_b32 v7, 4, v6
    v_lshl_add_u32 v7, v2, 2, v7
    v_add_u32 v119, s{S_T0}, v7
    v_mov_b64 v[8:9], 0
    v_mov_b64 v[10:11], 0''')
    a.vm(f'buffer_store_dwordx4 v[8:11], v{vMW}, {WS}, s{sH1L} offen sc0 sc1')
    a.vm(f'buffer_store_dwordx4 v[8:11], v{vMW}, {WS}, s{sH1L} offen offset:1024 sc0 sc1')
    a.vm(f'buffer_store_dword v8, v119, {WS}, s{sH2} offen sc0 sc1')

def r_weights(a):
    RA, RB = f's[{R_A}:{R_A+3}]', f's[{R_B}:{R_B+3}]'
    chunks = []
    def qk_load(ks, st):
        for hi in range(2):
            for r in range(4):
                for e in range(2):
                    a(f's_mov_b32 s{S_T0}, {(drow(ks,hi,r)+e)*8192}')
                    a.vm(f'buffer_load_dwordx2 {vr(st+(hi*4+r)*4+2*e,2)}, v116, {RA}, s{S_T0} offen', ('q', ks))
    def qk_fin(ks, st):
        a.wv(('q', ks))
        for j in range(8):
            b = st + j*4
            a(f'v_perm_b32 v104, v{b+2}, v{b}, s{S_LO}\nv_perm_b32 v105, v{b+2}, v{b}, s{S_HI}\nv_perm_b32 v106, v{b+3}, v{b+1}, s{S_LO}')
            a(f'v_perm_b32 v{96+j}, v{b+3}, v{b+1}, s{S_HI}')
            for t in range(3):
                a(f'v_accvgpr_write_b32 a{(ks*3+t)*8+j}, v{104+t}')
        a.ds(f'ds_write_b128 v{vSB}, v[96:99] offset:{ks*2048}')
        a.ds(f'ds_write_b128 v{vSB}, v[100:103] offset:{ks*2048+1024}')
        a.wl0()
    def v_load(ks):
        for hi in range(2):
            for r in range(4):
                for e in range(2):
                    a(f's_mov_b32 s{S_T0}, {(drow(ks,hi,r)+e)*8192}')
                    a.vm(f'buffer_load_dword v{WV+(ks*2+e)*8+hi*4+r}, v117, {RB}, s{S_T0} offen', ('v', ks))
    def v_fin(ks):
        a.wv(('v', ks))
        for j in range(8):
            x, y = WV+ks*16+j, WV+ks*16+8+j
            a(f'v_perm_b32 v104, v{y}, v{x}, s{S_LO}\nv_perm_b32 v{y}, v{y}, v{x}, s{S_HI}\nv_mov_b32 v{x}, v104')
    def o_load(ks, hi, st):
        for r in range(4):
            for e in range(2):
                a(f's_mov_b32 s{S_T0}, {(drow(ks,hi,r)+e)*1024}')
                a.vm(f'buffer_load_dwordx4 {vr(st+r*8+e*4,4)}, v118, {RA}, s{S_T0} offen', ('o', ks, hi))
    def o_fin(ks, hi, st):
        a.wv(('o', ks, hi))
        for t in range(8):
            inl = (ks == 0 and t < 4) or (ks == 1 and t >= 4)
            for r in range(4):
                b = st + r*8 + (t >> 1)
                sel = S_HI if t & 1 else S_LO
                d = 96 + (t & 1)*4 + r
                a(f'v_perm_b32 v{d}, v{b+4}, v{b}, s{sel}')
                if not inl:
                    idx = (t-4) if ks == 0 else 4+t
                    a(f'v_accvgpr_write_b32 a{192+idx*8+hi*4+r}, v{d}')
            if inl:
                slot = 8+t
                a.ds(f'ds_write_b128 v{vSB}, {vr(96+(t&1)*4,4)} offset:{slot*2048+hi*1024}')
                if t & 1: a.wl0()
    qk_load(0, 0); v_load(0); qk_load(1, 32)
    for ks in range(8):
        if ks+1 < 8: v_load(ks+1)
        qk_fin(ks, (ks % 3)*32)
        if ks+2 < 8: qk_load(ks+2, ((ks+2) % 3)*32)
        if ks == 6:
            srd(a, R_A, S_WO, 32*131072)
            o_load(0, 0, 64)
        if ks == 7:
            o_load(0, 1, 0); o_load(1, 0, 32)
        v_fin(ks)
    o_fin(0, 0, 64); o_load(1, 1, 64); o_fin(0, 1, 0); o_fin(1, 0, 32); o_fin(1, 1, 64)

def r_consts(a):
    a(f'''v_mov_b32 v{vH2S}, v119
    v_lshrrev_b32 v0, 4, v{vL16}
    v_and_b32 v1, 15, v0
    v_lshrrev_b32 v2, 4, v0
    v_lshrrev_b32 v3, 1, v2
    v_and_b32 v4, 1, v2
    v_lshrrev_b32 v5, 1, v1
    v_and_b32 v6, 1, v1
    v_lshlrev_b32 v{vAA}, 9, v3
    v_lshl_add_u32 v{vAA}, v5, 6, v{vAA}
    v_lshl_add_u32 v{vAA}, v4, 5, v{vAA}
    v_lshl_add_u32 v{vAA}, v6, 4, v{vAA}
    s_mov_b32 s{sODD}, 0xaaaaaaaa
    s_mov_b32 s{sODD+1}, 0xaaaaaaaa
    s_mov_b32 s{sX2}, 0x000f000f
    s_mov_b32 s{sX2+1}, 0x000f000f
    v_mov_b32 v7, 0x44444444
    v_mov_b32 v8, 0x4e4eeeee
    v_cndmask_b32 v{vIDX}, v7, v8, s[{sODD}:{sODD+1}]
    v_mov_b32 v7, 0x0000ffff
    v_mov_b32 v8, 0xffff0000
    v_cndmask_b32 v7, v7, v8, s[{sODD}:{sODD+1}]
    v_cmp_gt_u32 vcc, 32, v0
    s_movk_i32 s{S_T2}, 288
    s_lshr_b32 s{S_T0}, s{S_W}, 1
    v_cndmask_b32 v{vM1}, 0, v7, vcc
    v_cndmask_b32 v{vM3}, v7, 0, vcc
    s_mul_i32 s{S_T0}, s{S_T0}, {8*288}
    s_and_b32 s{S_T1}, s{S_W}, 1
    s_lshl_b32 s{sKE}, s{S_T1}, 10
    s_lshl_b32 s{S_T1}, s{S_T1}, 7
    s_add_u32 s{S_T0}, s{S_T0}, s{S_T1}
    s_add_u32 s{S_T0}, s{S_T0}, {L_QK}
    v_mul_lo_u32 v7, v2, s{S_T2}
    v_lshlrev_b32 v7, 1, v7
    v_lshl_add_u32 v7, v1, 3, v7
    v_add_u32 v{vQW}, s{S_T0}, v7
    v_mul_lo_u32 v7, v5, s{S_T2}
    v_lshl_add_u32 v7, v2, 4, v7
    v_add_u32 v{vQR}, {L_QK}, v7
    v_lshrrev_b32 v7, 3, v1
    v_bfe_u32 v8, v1, 2, 1
    v_lshl_add_u32 v7, v8, 1, v7
    v_lshl_add_u32 v7, v7, 1, v6
    v_mul_lo_u32 v7, v7, s{S_T2}
    v_lshl_add_u32 v7, v2, 4, v7
    v_add_u32 v{vKR}, {L_QK+8*288}, v7
    s_lshl_b32 s{S_T0}, s{S_W}, 9
    v_lshlrev_b32 v7, 3, v0
    v_add_u32 v{vT8}, s{S_T0}, v7
    s_add_u32 s{S_T0}, s{S_T0}, {L_O}
    v_lshlrev_b32 v7, 7, v2
    v_lshl_add_u32 v7, v1, 2, v7
    v_add_u32 v{vOW}, s{S_T0}, v7
    v_lshrrev_b32 v7, 2, v1
    v_lshlrev_b32 v8, 14, v7
    v_lshl_add_u32 v8, v2, 12, v8
    v_and_b32 v9, 3, v1
    v_lshl_add_u32 v8, v9, 4, v8
    s_lshl_b32 s{S_T0}, s{S_W}, 16
    v_add_u32 v{vH1S}, s{S_T0}, v8
    v_mov_b32 v10, 0x3f80
    v_mov_b32 v11, 0x3f800000
    v_cndmask_b32 v10, v10, v11, s[{sODD}:{sODD+1}]
    v_cmp_gt_u32 vcc, 2, v9
    s_nop 1
    v_cndmask_b32 v10, 0, v10, vcc''')
    for r in range(4):
        a(f'v_cmp_eq_u32 vcc, {r}, v7\ns_nop 1\nv_cndmask_b32 v{12+r}, 0, v10, vcc')
    a.ds(f'ds_write_b128 v{vL16}, v[12:15] offset:{L_SEL}')
    for r in (0, 1, 2, 4, 5, 6):
        a(f'v_mov_b32 v{ON+r}, 0x3f803f80')
    srd(a, R_B, S_MEM0, 8192)
    a(f'''v_bfe_u32 v7, v{vMW}, 6, 3
    v_lshrrev_b32 v8, 9, v{vMW}
    v_and_b32 v9, 63, v{vMW}
    v_lshl_add_u32 v9, v7, 10, v9
    v_lshl_add_u32 v9, v8, 6, v9''')
    a.vm(f'buffer_load_dwordx4 v[16:19], v9, s[{R_B}:{R_B+3}], 0 offen')
    a.vm(f'buffer_load_dwordx4 v[20:23], v9, s[{R_B}:{R_B+3}], 0 offen offset:128')
    a(f'''s_mov_b32 s{sC}, {hex(C_B)}
    s_mov_b32 s{sS}, 0
    s_lshl_b32 s{S_T0}, s{sH}, 14
    s_add_u32 s{sKV}, s{S_T0}, {KVX}
    s_lshl_b32 s{S_T0}, s{sH}, 12
    s_add_u32 s{sKM}, s{S_T0}, {KM}
    s_mov_b32 s{sFL}, {TIM+0x7000}
    s_lshl_b32 s{S_T0}, s{S_W}, 11
    s_add_u32 s{sKXM}, s{S_T0}, {L_KX}
    s_add_u32 s{sKXM+1}, s{S_T0}, {L_KX+8192}
    s_mov_b64 s[{sRDY}:{sRDY+1}], 0''')
    a.wv0()
    a.ds(f'ds_write_b128 v{vMW}, v[16:19]')
    a.ds(f'ds_write_b128 v{vMW}, v[20:23] offset:1024')

import struct, math
C_B = struct.unpack('<I', struct.pack('<f', 128**-0.5 * math.log2(math.e)))[0]

def r_team(a):
    a.w0()
    a(f'''s_barrier
    s_cmp_lg_u32 s{S_W}, 0
    s_cbranch_scc1 L_team_poll0
    s_cmp_eq_u32 s{S_XCC}, 0
    s_cselect_b32 s{S_T0}, 0x101, 1
    s_atomic_add s{S_T0}, s[{S_DBG}:{S_DBG+1}], {D_TEAM} glc
    s_waitcnt lgkmcnt(0)
    L_team_poll0:''')
    wait_init(a)
    a(f'''v_mov_b32 v1, {D_TEAM}
    L_team_poll:
    buffer_load_dword v2, v1, s[{R_DBG}:{R_DBG+3}], 0 offen sc0 sc1
    s_waitcnt vmcnt(0)
    v_readfirstlane_b32 s{S_T3}, v2
    s_and_b32 s{S_T0}, s{S_T3}, 0xff
    s_cmp_eq_u32 s{S_T0}, 32
    s_cbranch_scc1 L_team_ok''')
    spin(a, 'L_team_poll')
    a('L_team_ok:')

def need_kv(a, sidx, tmp=MA):
    l = a.lab('L_kv')
    a(f'''s_bitcmp1_b64 s[{sRDY}:{sRDY+1}], s{sidx}
    s_cbranch_scc1 {l}_ok
    s_lshl_b32 s{S_T1}, s{sH}, 8
    v_lshrrev_b32 v{tmp}, 2, v{vL16}
    {l}:
    buffer_load_dword v{tmp+1}, v{tmp}, {WS}, s{S_T1} offen sc1
    s_waitcnt vmcnt(0)
    v_cmp_ne_u32 s[{sRDY}:{sRDY+1}], 0, v{tmp+1}
    s_nop 4
    s_bitcmp1_b64 s[{sRDY}:{sRDY+1}], s{sidx}
    s_cbranch_scc1 {l}_ok''')
    spin(a, l)
    a(f'{l}_ok:')

def prefetch(a, p):
    a(f's_mov_b32 m0, s{sKXM+p}\ns_add_u32 s{S_T0}, s{sKV}, 8192')
    a.vm(f'buffer_load_dwordx4 v{vMW}, {WS}, s{sKV} offen sc1 lds')
    a.vm(f'buffer_load_dwordx4 v{vMW}, {WS}, s{sKV} offen offset:1024 sc1 lds')
    a.vm(f'buffer_load_dwordx4 {vr(VX,4)}, v{vMW}, {WS}, s{S_T0} offen sc1')
    a.vm(f'buffer_load_dwordx4 {vr(VX+4,4)}, v{vMW}, {WS}, s{S_T0} offen offset:1024 sc1')
    a(f's_add_u32 s{sKV}, s{sKV}, {32*16384}')

def sb_read(a, slot, pos, tag):
    a.ds(f'ds_read_b128 {vr(SB+pos*8,4)}, v{vSB} offset:{slot*2048}', tag)
    a.ds(f'ds_read_b128 {vr(SB+pos*8+4,4)}, v{vSB} offset:{slot*2048+1024}', tag)

def zero(a, b, n):
    for i in range(0, n, 2):
        a(f'v_mov_b64 {vr(b+i,2)}, 0')

def r_first(a):
    need_kv(a, sS)
    prefetch(a, 0)
    for i in range(4): sb_read(a, i, i, None)
    zero(a, QA, 24)
    a.w0()
    a('s_barrier')

def r_step(a, p, fast, prof=None):
    st = '' if fast else ' sc0 sc1'
    tag = (p+1) & 1
    pt = [1]
    def T():
        if prof is not None and p == prof:
            a(f's_memtime s[{PROF+2*pt[0]}:{PROF+2*pt[0]+1}]'); pt[0] += 1
    a.dq = []; a.vq = []
    T()
    for ks in range(8):
        a.ds(f'ds_read_b128 {vr(MA+4*ks,4)}, v{vAA} offset:{L_MEM+ks*1024}', ('A', ks))
    for T_ in range(2):
        a(f'v_mov_b64 {vr(VB+8*T_,2)}, {vr(VX+4*T_,2)}\nv_mov_b64 {vr(VB+8*T_+4,2)}, {vr(VX+4*T_+2,2)}')
    a(f's_add_u32 s{S_T2}, s{sS}, 1')
    need_kv(a, S_T2, tmp=VX)
    prefetch(a, 1-p)
    l = a.lab('L_nofl')
    a(f'''s_cmp_lg_u32 s{S_W}, 3
    s_cbranch_scc1 {l}
    s_mov_b64 exec, 1
    buffer_store_dword v{vIDX}, off, {WS}, s{sFL} sc0 sc1
    s_mov_b64 exec, -1
    {l}:
    s_lshl_b32 s{sFL}, s{sH}, 6
    s_add_u32 s{sFL}, s{sFL}, s{sS}
    s_lshl_b32 s{sFL}, s{sFL}, 2
    s_add_u32 s{sFL}, s{sFL}, {KMF}''')
    for ks in range(8):
        a.wl(('A', ks))
        for t in range(3):
            a(smf(QA+4*t, MA+4*ks, ar((ks*3+t)*8, 8)))
        a.wl(('W', ks))
        a(smf(QA+12, MA+4*ks, vr(SB+(ks & 3)*8, 8)))
        if ks < 4: sb_read(a, ks+4, ks, ('W', ks+4))
        else:
            for i in range(2):
                f = (ks-4)*2+i
                a.ds(f'ds_read_b128 {vr(SB+4*f,4)}, v{vL16} offset:{L_KX+8192*p+(f&1)*4096+(f>>1)*1024}', ('K', f >> 1))
    T()
    def V(i):
        a(smf(VA+4*(i & 1), MA+4*(i >> 1), vr(WV+i*8, 8)))
    V(0); V(1)
    ep = []
    for t in range(4):
        ep += [f'v_add_f32 v{QA+4*t}, v{QA+4*t}, v{QA+4*t+1}', f'v_add_f32 v{QA+4*t+2}, v{QA+4*t+2}, v{QA+4*t+3}']
    ep = ep[:2] + ep[2:4] + [f'v_cvt_pk_bf16_f32 v{QA}, v{QA}, v{QA+4}', f'v_cvt_pk_bf16_f32 v{QA+2}, v{QA+2}, v{QA+6}'] + ep[4:] + \
        [f'v_cvt_pk_bf16_f32 v{QA+1}, v{QA+8}, v{QA+12}', f'v_cvt_pk_bf16_f32 v{QA+3}, v{QA+10}, v{QA+14}']
    for i in range(4):
        V(2+i)
        for x in ep[3*i:3*i+3]: a(x)
    a.ds(f'ds_write_b64 v{vQW}, {vr(QA,2)}')
    a.ds(f'ds_write_b64 v{vQW}, {vr(QA+2,2)} offset:288')
    V(6)
    l = a.lab('L_noke')
    a(f'''s_cmp_lt_u32 s{S_W}, 2
    s_cbranch_scc1 {l}
    s_add_u32 s{S_T0}, s{sKM}, s{sKE}
    buffer_store_dwordx4 {vr(QA,4)}, v{vL16}, {WS}, s{S_T0} offen sc0 sc1
    {l}:''')
    V(7); zero(a, QA+12, 4); V(8); V(9)
    a.wl0()
    a('s_barrier')
    for kk in range(4):
        a.ds(f'ds_read_b128 {vr(MA+4*kk,4)}, v{vQR} offset:{kk*64}', ('Q', kk))
    def km(kk):
        a.ds(f'ds_read_b128 {vr(MA+16+4*kk,4)}, v{vKR} offset:{kk*64}', ('M', kk))
    km(0); V(10); V(11); km(1); V(12); V(13); km(2); V(14); V(15); km(3)
    T()
    S0, S1, SM = QA+4, QA+8, QA
    def sc(d, A, kk):
        a(f'v_mfma_f32_16x16x32_bf16 {vr(d,4)}, {vr(A,4)}, {vr(MA+4*kk,4)}, ' + ('0' if kk == 0 else vr(d, 4)))
    ve = []
    for T_ in range(2):
        b = VA+4*T_
        ve += [f'v_add_f32 v{b}, v{b}, v{b+1}', f'v_add_f32 v{b+2}, v{b+2}, v{b+3}']
    ve += [f'v_cvt_pk_bf16_f32 v{VB+2}, v{VA}, v{VA+2}', f'v_cvt_pk_bf16_f32 v{VB+10}, v{VA+4}, v{VA+6}',
           f'v_cvt_pk_bf16_f32 v{VB+6}, v{VA}, v{VA+2}', f'v_cvt_pk_bf16_f32 v{VB+14}, v{VA+4}, v{VA+6}',
           f'v_mov_b32 v{VA}, v{VB+2}', f'v_mov_b32 v{VA+1}, v{VB+10}']
    vi = [0]
    def fill(n):
        for x in ve[vi[0]:vi[0]+n]: a(x)
        vi[0] += n
    for kk in range(4):
        a.wl(('Q', kk), ('K', kk))
        sc(S0, SB+8*kk, kk)
        if kk > 0: fill(2)
        sc(S1, SB+8*kk+4, kk)
        if kk > 0: fill(2)
    a(f's_add_u32 s{S_T0}, s{sKM}, 2048')
    a(f'buffer_store_dwordx2 {vr(VA,2)}, v{vT8}, {WS}, s{S_T0} offen sc0 sc1')
    if p == 1:
        a(f's_cmp_eq_u32 s{sS}, 63\ns_cbranch_scc1 L_r_done')
    a(f's_add_u32 s{sKM}, s{sKM}, {32*4096}')
    for kk in range(4):
        a.wl(('M', kk))
        sc(SM, MA+16+4*kk, kk)
        if kk == 0:
            for i in range(2): sb_read(a, 8+i, i, ('O', i))
        if kk == 1:
            for i in range(2, 4): sb_read(a, 8+i, i, ('O', i))
        if kk == 2:
            od = f's[{sODD}:{sODD+1}]'
            X = MA+16
            a(f'''v_cndmask_b32 v{X}, v{S0}, v{S0+2}, {od}
            v_cndmask_b32 v{X+1}, v{S0+1}, v{S0+3}, {od}
            v_cndmask_b32 v{X+2}, v{S1}, v{S1+2}, {od}''')
    a(f'''v_cndmask_b32 v{X+3}, v{S1+1}, v{S1+3}, {od}
    v_max3_f32 v{X+5}, v{X}, v{X+1}, v{X+2}''')
    zero(a, VA+2, 6)
    a('s_nop 2')
    T()
    a(f'''v_cndmask_b32 v{X+4}, v{SM}, v{SM+1}, {od}
    v_max3_f32 v{X+5}, v{X+5}, v{X+3}, v{X+4}
    v_mov_b64 {vr(VA,2)}, 0
    s_nop 0
    v_max_f32_dpp v{X+6}, v{X+5}, v{X+5} quad_perm:[1,0,3,2] row_mask:0xf bank_mask:0xf
    v_max_f32_dpp v{X+5}, v{X+5}, v{X+5} quad_perm:[1,0,3,2] row_mask:0xf bank_mask:0xf
    s_nop 1
    v_permlane16_swap_b32 v{X+5}, v{X+6}
    v_max_f32 v{X+7}, v{X+5}, v{X+6}
    v_max_f32 v{X+5}, v{X+5}, v{X+6}
    s_nop 1
    v_permlane32_swap_b32 v{X+5}, v{X+7}
    v_max_f32 v{X+5}, v{X+5}, v{X+7}
    v_mul_f32 v{X+5}, s{sC}, v{X+5}''')
    for i in (4, 0, 1, 2, 3):
        a(f'v_fma_f32 v{X+i}, v{X+i}, s{sC}, -v{X+5}')
    for i in (4, 0, 1, 2, 3):
        a(f'v_exp_f32 v{X+i}, v{X+i}')
    P = QA
    a(f'''v_cvt_pk_bf16_f32 v{X+4}, v{X+4}, v{X+4}
    v_cvt_pk_bf16_f32 v{P}, v{X}, v{X+1}
    v_cvt_pk_bf16_f32 v{P+2}, v{X+2}, v{X+3}
    v_and_b32 v{P+1}, v{X+4}, v{vM1}
    v_and_b32 v{P+3}, v{X+4}, v{vM3}
    s_nop 1''')
    T()
    LA = QA+12
    a(smf(LA, P, vr(ON, 8), 1)); zero(a, MA, 6)
    a(smf(VA, P, vr(VB, 8), 1)); zero(a, MA+6, 6)
    a(smf(VA+4, P, vr(VB+8, 8), 1)); zero(a, MA+12, 4)
    a(f'''v_add_f32 v{LA}, v{LA}, v{LA+1}
    v_add_f32 v{LA+2}, v{LA+2}, v{LA+3}
    v_rcp_f32 v{LA}, v{LA}
    v_rcp_f32 v{LA+2}, v{LA+2}
    v_add_f32 v{VA}, v{VA}, v{VA+1}
    v_add_f32 v{VA+2}, v{VA+2}, v{VA+3}
    v_mul_f32 v{VA}, v{VA}, v{LA}
    v_mul_f32 v{VA+2}, v{VA+2}, v{LA+2}
    v_add_f32 v{VA+4}, v{VA+4}, v{VA+5}
    v_add_f32 v{VA+6}, v{VA+6}, v{VA+7}
    v_mul_f32 v{VA+4}, v{VA+4}, v{LA}
    v_mul_f32 v{VA+6}, v{VA+6}, v{LA+2}
    v_cvt_pk_bf16_f32 v{VA}, v{VA}, v{VA+4}
    v_cvt_pk_bf16_f32 v{VA+2}, v{VA+2}, v{VA+6}''')
    a.ds(f'ds_write2_b32 v{vOW}, v{VA}, v{VA+2} offset0:0 offset1:16')
    zero(a, MA+16, 16)
    a.wl0()
    a('s_barrier')
    OA = QA+4
    a.ds(f'ds_read_b128 {vr(OA,4)}, v{vAA} offset:{L_O}', 'o0')
    a.ds(f'ds_read_b128 {vr(OA+4,4)}, v{vAA} offset:{L_O+1024}', 'o1')
    T()
    a.wl('o0')
    for t in range(4):
        a(smf(MA+4*t, OA, vr(SB+8*t, 8)))
        sb_read(a, 12+t, t, ('O', 4+t))
    for t in range(4, 8):
        a(smf(MA+4*t, OA, ar(192+(t-4)*8, 8)))
    a.wl('o1')
    for t in range(4):
        a(smf(MA+4*t, OA+4, ar(192+(4+t)*8, 8)))
    OUT = VA
    def epi(t):
        b = MA+4*t
        return [f'v_add_f32 v{b}, v{b}, v{b+1}', f'v_add_f32 v{b+4}, v{b+4}, v{b+5}', f'v_add_f32 v{b+2}, v{b+2}, v{b+3}',
                f'v_add_f32 v{b+6}, v{b+6}, v{b+7}', f'v_cvt_pk_bf16_f32 v{OUT+t//2}, v{b}, v{b+4}',
                f'v_cvt_pk_bf16_f32 v{OUT+4+t//2}, v{b+2}, v{b+6}']
    tg = (lambda r: f'v_or_b32 v{r}, 1, v{r}') if tag else (lambda r: f'v_and_b32 v{r}, -2, v{r}')
    e = epi(0) + [tg(OUT), tg(OUT+4)] + epi(2)
    for t in range(4, 8):
        a.wl(('O', t))
        a(smf(MA+4*t, OA+4, vr(SB+8*(t-4), 8)))
        if t > 4:
            for x in e[(t-5)*3:(t-5)*3+3]: a(x)
    for x in e[9:]: a(x)
    for x in epi(4): a(x)
    for x in epi(6): a(x)
    a.vm(f'buffer_store_dwordx4 {vr(OUT,4)}, v{vH1S}, {WS}, s{sH1S} offen{st}')
    a.vm(f'buffer_store_dwordx4 {vr(OUT+4,4)}, v{vH1S}, {WS}, s{sH1S} offen offset:2048{st}')
    T()
    l = a.lab('L_h1')
    a.ds(f'ds_read_b128 {vr(MA+24,4)}, v{vL16} offset:{L_SEL}', 'sel')
    for i in range(4): sb_read(a, i, i, None)
    zero(a, QA, 16)
    a.wl('sel')
    a(f'''{l}:
    buffer_load_dwordx4 {vr(MA,4)}, v{vMW}, {WS}, s{sH1L} offen sc1
    buffer_load_dwordx4 {vr(MA+4,4)}, v{vMW}, {WS}, s{sH1L} offen offset:1024 sc1
    s_waitcnt vmcnt(1)
    v_mfma_f32_16x16x32_bf16 {vr(MA+8,4)}, {vr(MA+24,4)}, {vr(MA,4)}, 0
    s_waitcnt vmcnt(0)
    v_mfma_f32_16x16x32_bf16 {vr(MA+8,4)}, {vr(MA+24,4)}, {vr(MA+4,4)}, {vr(MA+8,4)}
    v_bitop3_b32 v{MA+12}, v{MA}, v{MA+4}, 1 bitop3:{'0x80' if tag else '0xa8'}
    v_cmp_ne_u32 vcc, {tag}, v{MA+12}
    s_cbranch_vccz {l}_ok''')
    spin(a, l)
    dpp = lambda d, n: f'v_add_f32_dpp v{d}, v{d}, v{d} row_ror:{n} row_mask:0xf bank_mask:0xf'
    a(f'''{l}_ok:
    v_mov_b64 {vr(VA,2)}, 0
    v_mov_b64 {vr(VA+2,2)}, 0
    v_mov_b64 {vr(VA+4,2)}, 0
    v_mov_b64 {vr(VA+6,2)}, 0
    s_nop 1
    {dpp(MA+8,4)}
    {dpp(MA+9,4)}
    s_nop 0
    {dpp(MA+8,8)}
    {dpp(MA+9,8)}
    s_mov_b64 exec, s[{sX2}:{sX2+1}]
    v_cvt_pk_bf16_f32 v{MA+8}, v{MA+8}, v{MA+9}
    {tg(MA+8)}
    buffer_store_dword v{MA+8}, v{vH2S}, {WS}, s{sH2} offen{st}
    s_mov_b64 exec, -1''')
    T()
    l = a.lab('L_h2')
    D = MA+16
    op = '0x80' if tag else '0xfe'
    a(f'''{l}:
    buffer_load_dwordx4 {vr(D,4)}, v{vMW}, {WS}, s{sH2} offen sc1
    buffer_load_dwordx4 {vr(D+4,4)}, v{vMW}, {WS}, s{sH2} offen offset:1024 sc1
    s_waitcnt vmcnt(1)
    ds_write_b128 v{vMW}, {vr(D,4)}
    v_bitop3_b32 v{MA+12}, v{D}, v{D+1}, v{D+2} bitop3:{op}
    s_waitcnt vmcnt(0)
    ds_write_b128 v{vMW}, {vr(D+4,4)} offset:1024
    v_bitop3_b32 v{MA+13}, v{D+3}, v{D+4}, v{D+5} bitop3:{op}
    v_bitop3_b32 v{MA+12}, v{MA+12}, v{D+6}, v{D+7} bitop3:{op}
    v_bitop3_b32 v{MA+12}, v{MA+12}, v{MA+13}, 1 bitop3:{'0x80' if tag else '0xa8'}
    v_cmp_ne_u32 vcc, {tag}, v{MA+12}
    s_cbranch_vccz {l}_ok
    s_waitcnt lgkmcnt(0)''')
    spin(a, l)
    a(f'''{l}_ok:
    s_add_u32 s{sS}, s{sS}, 1
    s_waitcnt lgkmcnt(0)
    s_barrier''')
    T()
    a.dq = []; a.vq = []
    return pt[0]

def r_role(a, prof=None):
    a('L_role_r:')
    if prof is not None: a(f's_memtime s[{PROF+20}:{PROF+21}]')
    r_setup(a); r_weights(a); r_consts(a); r_team(a)
    r_first(a)
    if prof is not None: a(f's_memtime s[{PROF+22}:{PROF+23}]')
    a(f's_lshr_b32 s{S_T3}, s{S_T3}, 8\ns_cmp_eq_u32 s{S_T3}, 32\ns_cbranch_scc0 L_r_slow')
    for fast, nm in ((1, 'L_r_fast'), (0, 'L_r_slow')):
        a(f'{nm}:')
        r_step(a, 0, fast, prof); r_step(a, 1, fast, prof)
        a(f's_branch {nm}')
    a(f'''L_r_done:
    s_waitcnt vmcnt(0) lgkmcnt(0)
    s_barrier
    s_mov_b64 exec, 1
    buffer_store_dword v{vIDX}, off, {WS}, s{sFL} sc0 sc1''')
    if prof is not None:
        a(f's_memtime s[{PROF}:{PROF+1}]\ns_waitcnt lgkmcnt(0)\ns_lshl_b32 s{S_T0}, s{sH}, 2\ns_add_u32 s{S_T0}, s{S_T0}, s{S_W}\ns_lshl_b32 s{S_T0}, s{S_T0}, 6\ns_add_u32 s{S_T0}, s{S_T0}, {TIM}')
        for i in range(12):
            a(f'v_mov_b32 v1, s{PROF+2*i}\nbuffer_store_dword v1, off, {WS}, s{S_T0} offset:{4*i}')
    a('s_waitcnt vmcnt(0)\ns_endpgm')
```

```python
from ga import *
import struct, math
fb = lambda x: hex(struct.unpack('<I', struct.pack('<f', x))[0])
LOG2E = math.log2(math.e)
sH, sT, sN, sI, sSEG, sXB, sA, sB, sC, sD, sFL, sM = 60, 61, 62, 63, 64, 65, 66, 67, 68, 69, 70, 72
R_X, R_O = 92, 96
WS = f's[{R_WS}:{R_WS+3}]'; RA = f's[{R_A}:{R_A+3}]'; RB = f's[{R_B}:{R_B+3}]'; RX = f's[{R_X}:{R_X+3}]'; RO = f's[{R_O}:{R_O+3}]'
L_QA, L_OA, L_G = 131072, 141312, 151552
L_QX, L_OI, L_RD = 65536, 73728, 90112
vL16, vXG, vVS, vKA, vVA, vW1, vW2, vT = 176, 177, 178, 179, 180, 181, 182, 183
PROF = 100

def mf16(d, A, B, C):
    return f'v_mfma_f32_16x16x32_bf16 {vr(d,4)}, {A}, {B}, {C}'
def mf32(d, A, B, C):
    return f'v_mfma_f32_32x32x16_bf16 {vr(d,16)}, {A}, {B}, {C}'
def stamp(a, prof, k):
    if prof is not None:
        a(f'''s_memtime s[{PROF}:{PROF+1}]
        s_lshl_b32 s{S_T0}, s{S_SLOT}, 6
        s_add_u32 s{S_T0}, s{S_T0}, {TIM+0x2000}
        s_waitcnt lgkmcnt(0)
        v_mov_b32 v{vT+7}, s{PROF}
        buffer_store_dword v{vT+7}, off, {WS}, s{S_T0} offset:{4*k}''')
        a.dq = []; a.vq.append(None)

def wpair_load(a, srd_, st, tag):
    for ks in range(16):
        for j in range(8):
            a(f's_mov_b32 s{S_T0}, {(32*ks+j)*8192}')
            a.vm(f'buffer_load_dword v{st+ks*8+j}, v{vW1}, {srd_}, s{S_T0} offen', (tag, ks))
def wpair_fin(a, st, tag, ab):
    for ks in range(16):
        a.wv((tag, ks))
        for r in range(4):
            x = st+ks*8+2*r
            a(f'''v_perm_b32 v{vT}, v{x+1}, v{x}, s{S_LO}
            v_perm_b32 v{vT+1}, v{x+1}, v{x}, s{S_HI}
            v_accvgpr_write_b32 a{ab+ks*8+r}, v{vT}
            v_accvgpr_write_b32 a{ab+ks*8+4+r}, v{vT+1}''')

def x_dma(a, sseg, sbuf):
    a(f'''s_lshl_b32 s{S_T0}, s{sseg}, 15
    s_lshl_b32 s{S_T1}, s{S_W}, 8
    s_add_u32 s{S_T0}, s{S_T0}, s{S_T1}
    s_lshl_b32 s{S_T1}, s{S_W}, 13
    s_add_u32 s{S_T1}, s{S_T1}, s{sbuf}''')
    for k in range(4):
        for tau in range(2):
            a(f's_add_u32 m0, s{S_T1}, {(k*2+tau)*1024}\ns_add_u32 s{S_T2}, s{S_T0}, {tau*16384+k*64}')
            a.vm(f'buffer_load_dwordx4 v{vXG}, {RX}, s{S_T2} offen lds')

def flag(a, soff, wave):
    l = a.lab('L_fl')
    a(f'''s_cmp_lg_u32 s{S_W}, {wave}
    s_cbranch_scc1 {l}
    s_mov_b64 exec, 1
    v_mov_b32 v{vT}, 1
    buffer_store_dword v{vT}, off, {WS}, s{soff} sc0 sc1
    s_mov_b64 exec, -1
    {l}:''')

def poll(a, soff, n):
    l = a.lab('L_po')
    a(f'''v_min_u32 v{vT}, {n-1}, v{vL16+8+7}
    v_lshlrev_b32 v{vT}, 2, v{vT}
    {l}:
    buffer_load_dword v{vT+1}, v{vT}, {WS}, s{soff} offen sc1
    s_waitcnt vmcnt(0)
    v_cmp_eq_u32 vcc, 0, v{vT+1}
    s_cbranch_vccz {l}_ok''')
    spin(a, l)
    a(f'{l}_ok:')
    a.vq = []
vLANE = vL16+15

def w_setup(a):
    a(f'''s_sub_u32 s{S_T0}, s{S_SLOT}, 32
    s_mul_i32 s{sH}, s{S_T0}, 9363
    s_lshr_b32 s{sH}, s{sH}, 16
    s_mul_i32 s{S_T1}, s{sH}, 7
    s_sub_u32 s{sT}, s{S_T0}, s{S_T1}
    s_cmp_eq_u32 s{sT}, 0
    s_cselect_b32 s{sN}, 10, 9
    v_mov_b32 v{vLANE}, v0
    v_lshlrev_b32 v{vL16}, 4, v0
    v_and_b32 v1, 15, v0
    v_lshrrev_b32 v2, 4, v0
    v_lshlrev_b32 v{vXG}, 10, v1
    v_lshl_add_u32 v{vXG}, v2, 4, v{vXG}
    v_and_b32 v3, 1, v2
    v_lshrrev_b32 v4, 1, v2
    v_lshlrev_b32 v5, 4, v1
    v_lshl_add_u32 v6, v4, 3, v5
    v_lshl_add_u32 v{vVS}, v3, 9, v6
    v_lshl_add_u32 v{vVA}, v3, 8, v6
    v_lshl_add_u32 v6, v3, 3, v5
    v_lshl_add_u32 v{vKA}, v4, 9, v6
    s_lshl_b32 s{S_T0}, s{sH}, 8
    s_lshl_b32 s{S_T1}, s{S_W}, 6
    s_add_u32 s{S_T0}, s{S_T0}, s{S_T1}
    v_lshlrev_b32 v{vW1}, 16, v2
    v_lshl_add_u32 v{vW1}, v1, 2, v{vW1}
    v_add_u32 v{vW1}, s{S_T0}, v{vW1}
    s_mov_b32 s{S_T2}, {8*3072}
    v_mul_lo_u32 v{vW2}, v2, s{S_T2}
    v_lshl_add_u32 v{vW2}, v1, 1, v{vW2}
    s_lshl_b32 s{S_T0}, s{sH}, 5
    s_lshl_b32 s{S_T1}, s{S_W}, 10
    s_add_u32 s{S_T0}, s{S_T0}, s{S_T1}
    v_add_u32 v{vW2}, s{S_T0}, v{vW2}''')
    srd(a, R_X, S_X, 2048*1024); srd(a, R_O, S_OUT, 2048*1024)
    a(f'''s_cmp_lg_u32 s{S_SLOT}, 32
    s_cbranch_scc1 L_noinit
    v_mov_b64 v[8:9], 0
    v_mov_b64 v[10:11], 0
    s_lshl_b32 s{S_T0}, s{S_W}, 13''')
    for i in range(8):
        a(f'buffer_store_dwordx4 v[8:11], v{vL16}, {WS}, s{S_T0} offen offset:{(i&3)*1024} sc0 sc1')
        if i == 3: a(f's_add_u32 s{S_T0}, s{S_T0}, 4096')
    a(f'''s_waitcnt vmcnt(0)
    s_barrier
    v_mov_b32 v8, 1
    buffer_store_dword v8, off, s[{R_DBG}:{R_DBG+3}], 0 offset:{D_INIT} sc0 sc1
    L_noinit:''')

WA = 192
def p1_weights(a):
    a(f's_mov_b32 s{sSEG}, s{sT}\ns_mov_b32 s{sXB}, 0')
    x_dma(a, sSEG, sXB)
    srd(a, R_A, S_WK, 512*8192); srd(a, R_B, S_WV, 512*8192)
    wpair_load(a, RA, 0, 'k'); wpair_fin(a, 0, 'k', 0)
    wpair_load(a, RB, 0, 'v'); wpair_fin(a, 0, 'v', 128)
    a(f's_cmp_eq_u32 s{S_W}, 3\ns_cbranch_scc1 L_gatew')
    srd(a, R_A, S_WQKV, 512*3072)
    for ks in range(16):
        for j in range(8):
            a(f's_mov_b32 s{S_T0}, {(32*ks+j)*3072}')
            a.vm(f'buffer_load_ushort v{ks*8+j}, v{vW2}, {RA}, s{S_T0} offen', ('a', ks))
    for ks in range(16):
        a.wv(('a', ks))
        for r in range(4):
            a(f'v_lshl_or_b32 v{WA+ks*4+r}, v{ks*8+2*r+1}, 16, v{ks*8+2*r}')
    a('s_branch L_gatew_done\nL_gatew:')
    srd(a, R_A, S_GATE, 1024)
    a(f'v_lshrrev_b32 v1, 4, v{vLANE}\nv_lshlrev_b32 v1, 4, v1')
    for ks in range(16):
        a(f'buffer_load_dwordx4 {vr(WA+ks*4,4)}, v1, {RA}, 0 offen offset:{ks*64}')
    a('L_gatew_done:')
    a.wv0()

XF, KAC, VAC, AAC, PK = 0, 32, 48, 64, 72
def p1_loop(a, var):
    L = f'L_p1_{var}'
    a(f'''{L}:
    s_waitcnt vmcnt(0)
    s_barrier''')
    a.vq = []; a.dq = []
    flag(a, sFL, 0)
    a(f'''s_lshl_b32 s{sFL}, s{sH}, 6
    s_add_u32 s{sFL}, s{sFL}, s{sSEG}
    s_lshl_b32 s{sFL}, s{sFL}, 2
    v_add_u32 v{vT+2}, s{sXB}, v{vL16}
    s_xor_b32 s{sXB}, s{sXB}, 32768
    s_add_u32 s{sA}, s{sSEG}, 7
    s_cmp_ge_u32 s{sA}, 64
    s_cbranch_scc1 {L}_nodma''')
    x_dma(a, sA, sXB)
    a(f'{L}_nodma:')
    def rd(ks):
        for tau in range(2):
            a.ds(f'ds_read_b128 {vr(XF+(ks&3)*8+tau*4,4)}, v{vT+2} offset:{(ks*2+tau)*1024}', ks)
    rd(0); rd(1); rd(2)
    for ks in range(16):
        if ks+3 < 16: rd(ks+3)
        a.wl(ks)
        x = lambda tau: vr(XF+(ks & 3)*8+tau*4, 4)
        C = lambda d: '0' if ks == 0 else vr(d, 4)
        for tau in range(2):
            for u in range(2):
                d = KAC+(tau*2+u)*4
                a(mf16(d, ar(ks*8+u*4, 4), x(tau), C(d)))
        for tau in range(2):
            for u in range(2):
                d = VAC+(u*2+tau)*4
                a(mf16(d, x(tau), ar(128+ks*8+u*4, 4), C(d)))
        for tau in range(2):
            d = AAC+tau*4
            w = vr(WA+ks*4, 4)
            a(mf16(d, x(tau), w, C(d)) if var else mf16(d, w, x(tau), C(d)))
    a(f'''s_lshl_b32 s{sA}, s{sSEG}, 5
    s_add_u32 s{sA}, s{sA}, s{sH}
    s_lshl_b32 s{sA}, s{sA}, 14
    s_add_u32 s{sA}, s{sA}, {KVX}
    s_lshl_b32 s{S_T0}, s{S_W}, 10
    s_add_u32 s{sB}, s{sA}, s{S_T0}
    s_add_u32 s{sC}, s{sB}, 4096
    s_lshl_b32 s{S_T0}, s{S_W}, 11
    s_add_u32 s{sA}, s{sA}, s{S_T0}
    s_add_u32 s{sA}, s{sA}, 8192''')
    for tau in range(2):
        for r in range(4):
            a(f'v_cvt_pk_bf16_f32 v{PK+tau*4+r}, v{KAC+tau*8+r}, v{KAC+tau*8+4+r}')
        a(f'buffer_store_dwordx4 {vr(PK+tau*4,4)}, v{vL16}, {WS}, s{sB+tau} offen sc0 sc1')
    for u in range(2):
        for tau in range(2):
            d = VAC+(u*2+tau)*4; o = PK+8+(u*2+tau)*2
            a(f'v_cvt_pk_bf16_f32 v{o}, v{d}, v{d+1}\nv_cvt_pk_bf16_f32 v{o+1}, v{d+2}, v{d+3}')
            a(f'buffer_store_dwordx2 {vr(o,2)}, v{vVS}, {WS}, s{sA} offen offset:{u*1024+tau*256} sc0 sc1')
    a(f'''s_lshl_b32 s{sA}, s{sH}, 17
    s_lshl_b32 s{S_T0}, s{sSEG}, 10
    s_add_u32 s{sA}, s{sA}, s{S_T0}
    s_add_u32 s{sA}, s{sA}, {AKV + (65536 if var else 0)}''')
    o = PK+16
    def pk():
        for tau in range(2):
            d = AAC+tau*4
            a(f'v_cvt_pk_bf16_f32 v{o+tau*2}, v{d}, v{d+1}\nv_cvt_pk_bf16_f32 v{o+tau*2+1}, v{d+2}, v{d+3}')
    if var:
        pk()
        for tau in range(2):
            a(f'buffer_store_dwordx2 {vr(o+tau*2,2)}, v{vVA}, {WS}, s{sA} offen offset:{tau*512} sc0 sc1')
    else:
        a(f's_cmp_eq_u32 s{S_W}, 1\ns_cbranch_scc0 {L}_nk')
        pk()
        for tau in range(2):
            a(f'buffer_store_dwordx2 {vr(o+tau*2,2)}, v{vKA}, {WS}, s{sA} offen offset:{tau*256} sc0 sc1')
        a(f's_branch {L}_end\n{L}_nk:\ns_cmp_eq_u32 s{S_W}, 0\ns_cbranch_scc0 {L}_gate')
        for i in range(8):
            a(f'v_mul_f32 v{AAC+i}, {fb(0.25*LOG2E)}, v{AAC+i}')
        pk()
        a(f's_lshl_b32 s{S_T0}, s{sI}, 10\ns_add_u32 s{S_T0}, s{S_T0}, {L_QA}\nv_add_u32 v{vT}, s{S_T0}, v{vKA}')
        for tau in range(2):
            a(f'ds_write_b64 v{vT}, {vr(o+tau*2,2)} offset:{tau*256}')
        a(f's_branch {L}_end\n{L}_gate:')
        for tau in range(2):
            d = AAC+tau*4
            a(f'v_mul_f32 v{d}, {fb(-LOG2E)}, v{d}\nv_exp_f32 v{d}, v{d}\ns_nop 0\nv_add_f32 v{d}, 1.0, v{d}\nv_rcp_f32 v{d}, v{d}')
        a(f'''s_lshl_b32 s{S_T0}, s{sI}, 7
        s_add_u32 s{S_T0}, s{S_T0}, {L_G}
        v_and_b32 v{vT}, 15, v{vLANE}
        v_lshlrev_b32 v{vT}, 2, v{vT}
        v_add_u32 v{vT}, s{S_T0}, v{vT}
        ds_write2_b32 v{vT}, v{AAC}, v{AAC+4} offset0:0 offset1:16''')
    a(f'''{L}_end:
    s_waitcnt lgkmcnt(0)
    s_add_u32 s{sI}, s{sI}, 1
    s_add_u32 s{sSEG}, s{sSEG}, 7
    s_cmp_lt_u32 s{sSEG}, 64
    s_cbranch_scc1 {L}''')
    a.vq = []; a.dq = []

def p1(a):
    a(f's_mov_b32 s{sI}, 0\ns_mov_b32 s{sFL}, {TIM+0x7000}\ns_cmp_eq_u32 s{S_W}, 2\ns_cbranch_scc1 L_p1_1')
    p1_loop(a, 0)
    a('s_branch L_p1_done')
    p1_loop(a, 1)
    a('L_p1_done:\ns_waitcnt vmcnt(0)\ns_barrier')
    flag(a, sFL, 0)
    a(f's_lshl_b32 s{sA}, s{sH}, 3\ns_add_u32 s{sA}, s{sA}, s{sT}\ns_lshl_b32 s{sA}, s{sA}, 2\ns_add_u32 s{sA}, s{sA}, {AF}')
    flag(a, sA, 1)

def w_role(a, mode, prof):
    import gw2
    w_setup(a)
    stamp(a, prof, 0)
    p1_weights(a)
    wait_init(a)
    stamp(a, prof, 1)
    p1(a)
    stamp(a, prof, 2)
    if mode == 'p1':
        a('s_waitcnt vmcnt(0)\ns_endpgm'); return
    gw2.rest(a, mode, prof)
```

```python
from gw import *
L_PB, L_V = 32768, 64512
L_QX, L_OI, OST = 32768, 40960, 272
KR, S, NM, O, P, Q, VF, MX, vA0, vA1, ST = 0, 64, 112, 128, 144, 152, 156, 172, 174, 175, 192
WO8 = 240
def wo_reg(ks, nu):
    return ar(128+(ks*4+nu)*4, 4) if ks < 8 else vr(WO8+nu*4, 4)

def chunk_load(a, c):
    if c < 4:
        for k in range(4):
            for j in range(8):
                a(f's_mov_b32 s{S_T0}, {(32*(4*c+k)+j)*8192}')
                a(f'buffer_load_dword v{ST+k*8+j}, v{vW1}, {RA}, s{S_T0} offen')
    else:
        if c == 6: srd(a, R_A, S_WOA, 512*1024)
        for k in range(3):
            ks = 3*(c-4)+k
            for jj in range(8):
                if jj % 4 == 0:
                    if ks < 8: a(f's_lshl_b32 s{S_T0}, s{sH}, 17\ns_add_u32 s{S_T0}, s{S_T0}, {(16*ks+jj)*1024}')
                    else: a(f's_lshl_b32 s{S_T0}, s{sH}, 14\ns_add_u32 s{S_T0}, s{S_T0}, {jj*1024}')
                a(f'buffer_load_dwordx2 {vr(ST+k*16+jj*2,2)}, v{vW2}, {RB if ks < 8 else RA}, s{S_T0} offen offset:{(jj&3)*1024}')
def chunk_fin(a, c):
    if c < 4:
        for k in range(4):
            for r in range(4):
                x = ST+k*8+2*r; ks = 4*c+k
                a(f'''v_perm_b32 v{vT}, v{x+1}, v{x}, s{S_LO}
                v_perm_b32 v{vT+1}, v{x+1}, v{x}, s{S_HI}
                v_accvgpr_write_b32 a{ks*8+r}, v{vT}
                v_accvgpr_write_b32 a{ks*8+4+r}, v{vT+1}''')
    else:
        for k in range(3):
            ks = 3*(c-4)+k
            for r in range(4):
                x = ST+k*16+4*r
                for nu in range(4):
                    sel = S_HI if nu & 1 else S_LO
                    if ks < 8:
                        a(f'v_perm_b32 v{vT+nu}, v{x+2+(nu>>1)}, v{x+(nu>>1)}, s{sel}')
                    else:
                        a(f'v_perm_b32 v{WO8+nu*4+r}, v{x+2+(nu>>1)}, v{x+(nu>>1)}, s{sel}')
                if ks < 8:
                    for nu in range(4): a(f'v_accvgpr_write_b32 a{128+(ks*4+nu)*4+r}, v{vT+nu}')

def p2_setup(a):
    srd(a, R_A, S_WQ, 512*8192); srd(a, R_B, S_WO, 32*131072)
    a(f'''v_and_b32 v1, 31, v{vLANE}
    v_lshrrev_b32 v2, 5, v{vLANE}
    s_lshl_b32 s{S_T0}, s{S_W}, 8
    v_lshlrev_b32 v{vW2}, 13, v2
    v_lshl_add_u32 v{vW2}, v1, 3, v{vW2}
    v_add_u32 v{vW2}, s{S_T0}, v{vW2}
    s_mul_i32 s{sA}, s{S_W}, {16*1040}
    s_add_u32 s{sA}, s{sA}, {L_V}
    v_lshlrev_b32 v3, 8, v2
    v_lshl_add_u32 v3, v1, 4, v3
    v_add_u32 v4, 512, v3
    v_mov_b32 v5, 1024
    v_cmp_gt_u32 vcc, 16, v1
    v_mov_b32 v8, 0x3f803f80
    v_mov_b32 v9, 0x3f803f80
    v_cndmask_b32 v3, v5, v3, vcc
    v_cndmask_b32 v4, v5, v4, vcc
    v_add_u32 v{vA0}, s{sA}, v3
    v_add_u32 v{vA1}, s{sA}, v4
    v_mov_b32 v10, 0x3f803f80
    v_mov_b32 v11, 0x3f803f80
    v_and_b32 v5, 15, v1
    v_mul_u32_u24 v5, 1040, v5
    v_add_u32 v5, s{sA}, v5
    ds_write_b128 v5, v[8:11] offset:1024''')
    chunk_load(a, 0)
    a(f's_mov_b32 s{sSEG}, s{sT}\ns_mov_b32 s{sXB}, 0')
    x_dma(a, sSEG, sXB)
    a(f's_lshl_b32 s{sB}, s{sH}, 5\ns_add_u32 s{sB}, s{sB}, {AF}')
    poll(a, sB, 7)
    a(f'''s_lshl_b32 s{sB}, s{sH}, 17
    s_lshl_b32 s{S_T0}, s{S_W}, 14
    s_add_u32 s{sB}, s{sB}, s{S_T0}
    s_add_u32 s{sB}, s{sB}, {AKV}''')
    for j in range(16):
        if j and j % 4 == 0: a(f's_add_u32 s{sB}, s{sB}, 4096')
        a(f'buffer_load_dwordx4 {vr(KR+4*j,4)}, v{vL16}, {WS}, s{sB} offen offset:{(j&3)*1024} sc1')
    a(f's_add_u32 s{sB}, s{sB}, {65536-3*4096}')
    for j in range(16):
        a(f's_add_u32 m0, s{sA}, {j*1040}\ns_add_u32 s{S_T0}, s{sB}, {j*1024}')
        a(f'buffer_load_dwordx4 v{vL16}, {WS}, s{S_T0} offen sc1 lds')
    a(f's_mov_b32 s{sI}, 0')

def p2_loop(a):
    a(f'''L_p2:
    s_lshl_b32 s{S_T0}, s{sI}, 10
    v_add_u32 v{vT}, s{S_T0}, v{vL16}
    ds_read_b128 {vr(Q,4)}, v{vT} offset:{L_QA & 0xffff}
    s_waitcnt vmcnt(0)'''.replace(f'v_add_u32 v{vT}, s{S_T0}, v{vL16}', f's_add_u32 s{S_T0}, s{S_T0}, {L_QA & ~0xffff}\nv_add_u32 v{vT}, s{S_T0}, v{vL16}'))
    for c in range(1, 8):
        a(f's_cmp_eq_u32 s{sI}, {c}\ns_cbranch_scc1 L_ch{c}')
    a('L_ch_ret:')
    a.dq = []; a.vq = []
    a.wl0()
    q = vr(Q, 4); K = lambda j: vr(KR+4*j, 4)
    def vrd(j):
        a.ds(f'ds_read_b128 {vr(VF+(j&1)*8,4)}, v{vA0} offset:{j*1040}', ('v', j))
        a.ds(f'ds_read_b128 {vr(VF+(j&1)*8+4,4)}, v{vA1} offset:{j*1040}', ('v', j))
    def mx(j):
        b = S+(j % 3)*16
        for r in range(8):
            m = MX+(r & 1)
            if j == 0 and r < 2: a(f'v_max_f32 v{m}, v{b+2*r}, v{b+2*r+1}')
            else: a(f'v_max3_f32 v{m}, v{m}, v{b+2*r}, v{b+2*r+1}')
    for j in range(16):
        a(mf32(S+(j % 3)*16, K(j), q, '0'))
        if j == 1: vrd(0); a('s_nop 7')
        if j >= 2: mx(j-2)
    mx(14)
    a('s_nop 3')
    mx(15)
    a(f'''v_max_f32 v{MX}, v{MX}, v{MX+1}
    v_max_f32 v{MX+1}, v{MX}, v{MX}
    s_nop 1
    v_permlane32_swap_b32 v{MX}, v{MX+1}
    v_max_f32 v{MX}, v{MX}, v{MX+1}''')
    for r in range(16): a(f'v_sub_f32 v{NM+r}, 0, v{MX}')
    a('s_nop 1')
    nm = vr(NM, 16)
    a(mf32(S, K(0), q, nm))
    a('s_nop 7')
    for j in range(16):
        b = S+(j & 1)*16
        if j+1 < 16:
            a(mf32(S+((j+1) & 1)*16, K(j+1), q, nm))
            vrd(j+1)
        else: a('s_nop 0')
        ex = lambda r: a(f'v_exp_f32 v{b+r}, v{b+r}')
        cv = lambda r: a(f'v_cvt_pk_bf16_f32 v{P+r}, v{b+2*r}, v{b+2*r+1}')
        if j == 0: a('s_nop 1')
        for r in range(8): ex(r)
        ex(8)
        for r in range(4): cv(r)
        ex(9); ex(10)
        a.wl(('v', j))
        a(mf32(O, vr(VF+(j & 1)*8, 4), vr(P, 4), '0' if j == 0 else vr(O, 16)))
        for r in range(11, 16): ex(r)
        cv(4); cv(5); cv(6); cv(7)
        a('s_nop 1')
        a(mf32(O, vr(VF+(j & 1)*8+4, 4), vr(P+4, 4), vr(O, 16)))
    a(f'''s_and_b32 s{S_T0}, s{sI}, 1
    s_mul_i32 s{S_T0}, s{S_T0}, 10240
    s_add_u32 s{S_T0}, s{S_T0}, {L_PB}
    s_mul_i32 s{S_T1}, s{S_W}, 2560
    s_add_u32 s{S_T1}, s{S_T1}, s{S_T0}
    s_lshl_b32 s{S_T2}, s{S_W}, 9
    s_add_u32 s{S_T2}, s{S_T2}, s{S_T0}
    v_lshlrev_b32 v{vT}, 3, v{vLANE}
    v_add_u32 v{vT+1}, s{S_T1}, v{vT}
    v_add_u32 v{vT+2}, s{S_T2}, v{vT}
    v_add_u32 v{vT+3}, s{S_T0}, v{vT}
    s_lshl_b32 s{S_T0}, s{sI}, 7
    s_add_u32 s{S_T0}, s{S_T0}, {L_G}
    v_and_b32 v{vT+4}, 31, v{vLANE}
    v_lshlrev_b32 v{vT+5}, 2, v{vT+4}
    v_add_u32 v{vT+5}, s{S_T0}, v{vT+5}
    ds_read_b32 v{vT+5}, v{vT+5}
    v_mov_b32 v{O+9}, v{MX}''')
    for p in range(5):
        a(f'ds_write_b64 v{vT+1}, {vr(O+2*p,2)} offset:{p*512}')
    a(f'''s_lshl_b32 s{S_T0}, s{sI}, 10
    s_add_u32 s{S_T0}, s{S_T0}, {L_OA}
    s_lshr_b32 s{S_T1}, s{S_W}, 1
    s_lshl_b32 s{S_T1}, s{S_T1}, 4
    s_add_u32 s{S_T0}, s{S_T0}, s{S_T1}
    s_and_b32 s{S_T1}, s{S_W}, 1
    s_lshl_b32 s{S_T1}, s{S_T1}, 2
    s_add_u32 s{S_T0}, s{S_T0}, s{S_T1}
    v_lshrrev_b32 v{vT}, 5, v{vLANE}
    v_lshlrev_b32 v{vT}, 3, v{vT}
    v_lshl_add_u32 v{vT}, v{vT+4}, 5, v{vT}
    v_add_u32 v{vT}, s{S_T0}, v{vT}
    s_waitcnt lgkmcnt(0)
    s_barrier''')
    LM, OO = S, S+8
    for w in range(4):
        a(f'ds_read_b64 {vr(LM+2*w,2)}, v{vT+3} offset:{w*2560+2048}')
    for w in range(4):
        a(f'ds_read_b64 {vr(OO+2*w,2)}, v{vT+2} offset:{w*2560}')
    a(f'''s_waitcnt lgkmcnt(4)
    v_max3_f32 v{MX}, v{LM+1}, v{LM+3}, v{LM+5}
    v_max_f32 v{MX}, v{MX}, v{LM+7}''')
    for w in range(4): a(f'v_sub_f32 v{LM+2*w+1}, v{LM+2*w+1}, v{MX}')
    for w in range(4): a(f'v_exp_f32 v{LM+2*w+1}, v{LM+2*w+1}')
    a(f'''s_waitcnt lgkmcnt(0)
    v_mul_f32 v{LM}, v{LM}, v{LM+1}
    v_mul_f32 v{OO}, v{OO}, v{LM+1}
    v_mul_f32 v{OO+1}, v{OO+1}, v{LM+1}''')
    for w in range(1, 4):
        a(f'''v_fma_f32 v{LM}, v{LM+2*w}, v{LM+2*w+1}, v{LM}
        v_fma_f32 v{OO}, v{OO+2*w}, v{LM+2*w+1}, v{OO}
        v_fma_f32 v{OO+1}, v{OO+2*w+1}, v{LM+2*w+1}, v{OO+1}''')
    a(f'''v_rcp_f32 v{LM}, v{LM}
    s_add_u32 s{sI}, s{sI}, 1
    v_mul_f32 v{LM}, v{LM}, v{vT+5}
    v_mul_f32 v{OO}, v{OO}, v{LM}
    v_mul_f32 v{OO+1}, v{OO+1}, v{LM}
    v_cvt_pk_bf16_f32 v{OO}, v{OO}, v{OO+1}
    ds_write_b32 v{vT}, v{OO}
    s_cmp_lt_u32 s{sI}, s{sN}
    s_cbranch_scc1 L_p2
    s_branch L_p2_done''')
    for c in range(1, 8):
        a(f'L_ch{c}:')
        chunk_fin(a, c-1)
        if c < 7: chunk_load(a, c)
        a('s_branch L_ch_ret')
    a('L_p2_done:')

XF, QAC, PK, KX, KMF_, QF, VXF, VM, S0, S1, SM, MK, PB, PW = 0, 32, 48, 56, 88, 104, 120, 136, 140, 144, 148, 152, 160, 164
OT, AF_, SEL, RL = 0, 64, 192, 208
vKM, vVM, vOW, vOR, vOA, vPS, vPL, vOS, vG, vQR, vVX = range(196, 207)
sPREV, sCB = 71, 72
C_B = 128**-0.5*LOG2E

def p3_setup(a):
    a(f'''v_and_b32 v1, 15, v{vLANE}
    v_lshrrev_b32 v2, 4, v{vLANE}
    v_and_b32 v3, 31, v{vLANE}
    v_lshrrev_b32 v4, 5, v{vLANE}
    s_and_b32 s{sA}, s{S_W}, 1
    s_lshr_b32 s{sB}, s{S_W}, 1
    v_lshrrev_b32 v5, 2, v1
    v_lshlrev_b32 v5, 8, v5
    v_lshl_add_u32 v5, v2, 5, v5
    v_and_b32 v6, 1, v1
    v_lshl_add_u32 v{vKM}, v6, 3, v5
    s_lshl_b32 s{S_T0}, s{sB}, 10
    s_add_u32 s{S_T0}, s{S_T0}, 2048
    v_lshlrev_b32 v5, 3, v{vLANE}
    v_add_u32 v{vVM}, s{S_T0}, v5
    s_lshl_b32 s{S_T0}, s{sB}, 12
    s_add_u32 s{S_T0}, s{S_T0}, 8192
    v_add_u32 v{vVX}, s{S_T0}, v{vVS}
    s_mul_i32 s{S_T0}, s{sA}, {16*OST}
    s_lshl_b32 s{S_T1}, s{sB}, 7
    s_add_u32 s{S_T0}, s{S_T0}, s{S_T1}
    s_add_u32 s{S_T0}, s{S_T0}, {L_OI}
    v_mul_u32_u24 v5, {OST}, v1
    v_lshl_add_u32 v5, v2, 4, v5
    v_add_u32 v{vOW}, s{S_T0}, v5
    v_mul_u32_u24 v5, {OST}, v3
    v_lshl_add_u32 v5, v4, 4, v5
    v_add_u32 v{vOR}, {L_OI}, v5
    v_lshlrev_b32 v5, 5, v3
    v_lshl_add_u32 v5, v4, 4, v5
    v_add_u32 v{vOA}, {L_OA}, v5
    s_lshl_b32 s{S_T0}, s{S_W}, 8
    v_lshlrev_b32 v5, 12, v4
    v_lshl_add_u32 v5, v3, 3, v5
    v_add_u32 v{vPS}, s{S_T0}, v5
    v_lshlrev_b32 v5, 15, v2
    v_lshl_add_u32 v5, v1, 4, v5
    v_add_u32 v{vPL}, s{S_T0}, v5
    v_lshlrev_b32 v5, 3, v2
    v_lshl_add_u32 v5, v1, 4, v5
    v_add_u32 v{vOS}, s{S_T0}, v5
    s_lshl_b32 s{S_T0}, s{sA}, 6
    s_add_u32 s{S_T0}, s{S_T0}, {L_G}
    v_lshlrev_b32 v5, 2, v1
    v_add_u32 v{vG}, s{S_T0}, v5
    s_lshl_b32 s{S_T0}, s{sA}, 12
    s_add_u32 s{S_T0}, s{S_T0}, {L_QX}
    v_add_u32 v{vQR}, s{S_T0}, v{vL16}
    s_lshl_b32 s{S_T0}, s{sA}, 4
    v_add_u32 v5, s{S_T0}, v1
    v_lshlrev_b32 v6, 2, v2
    v_sub_u32 v5, v5, v6
    v_mov_b32 v6, {fb(-1e9*128**0.5)}''')
    for t in range(2):
        for r in range(4):
            a(f'v_cmp_gt_i32 vcc, {16*t+r}, v5\ns_nop 1\nv_cndmask_b32 v{MK+4*t+r}, 0, v6, vcc')
    for r in range(12): a(f'v_mov_b32 v{PW+r}, 0')
    a(f'''v_mov_b32 v5, 0x3f80
    v_mov_b32 v6, 0x3f800000
    v_and_b32 v7, 1, v1
    v_cmp_eq_u32 vcc, 1, v7
    v_bfe_u32 v7, v1, 1, 2
    s_nop 0
    v_cndmask_b32 v5, v5, v6, vcc''')
    for r in range(4):
        a(f'v_cmp_eq_u32 vcc, {r}, v7\ns_nop 1\nv_cndmask_b32 v{SEL+r}, 0, v5, vcc')
    a(f's_mov_b32 s{sI}, 0\ns_mov_b32 s{sCB}, {fb(C_B)}')

def reduce_(a):
    a(f's_lshl_b32 s{sA}, s{sPREV}, 7\ns_add_u32 s{sA}, s{sA}, {PF}')
    poll(a, sA, 32)
    a(f'''s_lshl_b32 s{sA}, s{sPREV}, 20
    s_lshl_b32 s{S_T0}, s{sH}, 10
    s_add_u32 s{sA}, s{sA}, s{S_T0}
    s_add_u32 s{sA}, s{sA}, {PART}''')
    for j in range(8):
        a.vm(f'buffer_load_dwordx4 {vr(RL+4*j,4)}, v{vPL}, {WS}, s{sA} offen sc1', ('r', j))
        if j < 7: a(f's_add_u32 s{sA}, s{sA}, 131072')
    for j in range(8):
        a.wv(('r', j))
        a(mf16(SM, vr(SEL, 4), vr(RL+4*j, 4), '0' if j == 0 else vr(SM, 4)))
    a(f'''s_lshl_b32 s{sA}, s{sPREV}, 5
    s_add_u32 s{sA}, s{sA}, s{sH}
    s_lshl_b32 s{sA}, s{sA}, 10
    s_nop 4
    v_cvt_pk_bf16_f32 v{vT+5}, v{SM}, v{SM+1}
    v_cvt_pk_bf16_f32 v{vT+6}, v{SM+2}, v{SM+3}
    s_mov_b32 exec_hi, 0''')
    a.vm(f'buffer_store_dwordx2 {vr(vT+5,2)}, v{vOS}, {RO}, s{sA} offen')
    a('s_mov_b32 exec_hi, -1')

def p3_loop(a):
    a(f'''L_p3:
    s_waitcnt vmcnt(0) lgkmcnt(0)
    s_barrier''')
    a.vq = []; a.dq = []
    a(f'''s_lshl_b32 s{sA}, s{sSEG}, 5
    s_add_u32 s{sA}, s{sA}, s{sH}
    s_lshl_b32 s{sD}, s{sA}, 12
    s_add_u32 s{sD}, s{sD}, {KM}
    s_lshl_b32 s{sA}, s{sA}, 14
    s_add_u32 s{sA}, s{sA}, {KVX}
    s_add_u32 s{sB}, s{sA}, 4096''')
    def rd(ks):
        for tau in range(2):
            a.ds(f'ds_read_b128 {vr(XF+(ks&3)*8+tau*4,4)}, v{vL16} offset:{(ks*2+tau)*1024}', ks)
    rd(0); rd(1); rd(2)
    ld = []
    for t in range(2):
        for kk in range(4):
            ld.append((f'buffer_load_dwordx4 {vr(KX+(t*4+kk)*4,4)}, v{vL16}, {WS}, s{sA+t} offen offset:{kk*1024} sc1', 'kx'))
    for w2 in range(2):
        for T in range(2):
            for t in range(2):
                ld.append((f'buffer_load_dwordx2 {vr(VXF+(w2*2+T)*4+2*t,2)}, v{vVX}, {WS}, s{sA} offen offset:{w2*2048+T*1024+t*256} sc1', 'vx'))
    for ks in range(16):
        if ks+3 < 16: rd(ks+3)
        a.wl(ks)
        for tau in range(2):
            for u in range(2):
                d = QAC+(tau*2+u)*4
                a(mf16(d, ar(ks*8+u*4, 4), vr(XF+(ks & 3)*8+tau*4, 4), '0' if ks == 0 else vr(d, 4)))
            if tau == 0: a.vm(*ld[ks])
    a(f'''s_lshl_b32 s{S_T0}, s{S_W}, 10
    s_add_u32 s{S_T0}, s{S_T0}, {L_QX}
    v_add_u32 v{vT}, s{S_T0}, v{vL16}
    s_lshl_b32 s{S_T0}, s{sI}, 7
    v_add_u32 v{vT+4}, s{S_T0}, v{vG}
    ds_read_b32 v{vT+4}, v{vT+4}
    s_nop 1''')
    for tau in range(2):
        for r in range(4):
            a(f'v_cvt_pk_bf16_f32 v{PK+tau*4+r}, v{QAC+tau*8+r}, v{QAC+tau*8+4+r}')
        a(f'ds_write_b128 v{vT}, {vr(PK+tau*4,4)} offset:{tau*4096}')
    a.wl0()
    a('s_barrier')
    for kk in range(4):
        a.ds(f'ds_read_b128 {vr(QF+4*kk,4)}, v{vQR} offset:{kk*1024}', ('q', kk))
    a(f's_add_u32 s{sA}, s{sSEG}, 7\ns_cmp_ge_u32 s{sA}, 64\ns_cbranch_scc1 L_p3_nodma')
    vq = list(a.vq)
    x_dma(a, sA, sXB)
    a('L_p3_nodma:')
    a.vq = vq
    a.wv('kx')
    for kk in range(4):
        a.wl(('q', kk))
        for t in range(2):
            d = S0+4*t
            a(mf16(d, vr(KX+(t*4+kk)*4, 4), vr(QF+4*kk, 4), vr(MK+4*t, 4) if kk == 0 else vr(d, 4)))
    a(f's_cmp_eq_u32 s{sI}, 0\ns_cbranch_scc1 L_p3_nored')
    reduce_(a)
    a('L_p3_nored:')
    a(f's_lshl_b32 s{sA}, s{sH}, 6\ns_add_u32 s{sA}, s{sA}, s{sSEG}\ns_lshl_b32 s{sA}, s{sA}, 2\ns_add_u32 s{sA}, s{sA}, {KMF}')
    poll(a, sA, 1)
    for kk in range(4):
        for i in range(2):
            a.vm(f'buffer_load_dwordx2 {vr(KMF_+4*kk+2*i,2)}, v{vKM}, {WS}, s{sD} offen offset:{(kk>>1)*1024+(kk&1)*128+16*i} sc1', ('m', kk))
    for w2 in range(2):
        a.vm(f'buffer_load_dwordx2 {vr(VM+2*w2,2)}, v{vVM}, {WS}, s{sD} offen offset:{w2*512} sc1', 'vm')
    X = vT
    a(f'''v_max3_f32 v{X}, v{S0}, v{S0+1}, v{S0+2}
    v_max3_f32 v{X}, v{X}, v{S0+3}, v{S1}
    v_max3_f32 v{X}, v{X}, v{S1+1}, v{S1+2}
    v_max_f32 v{X}, v{X}, v{S1+3}
    v_sub_f32 v{vT+4}, 1.0, v{vT+4}''')
    for kk in range(4):
        a.wv(('m', kk))
        a(mf16(SM, vr(KMF_+4*kk, 4), vr(QF+4*kk, 4), '0' if kk == 0 else vr(SM, 4)))
    a(f'''s_nop 7
    v_max3_f32 v{X}, v{X}, v{SM}, v{SM+1}
    v_max_f32 v{X+1}, v{X}, v{X}
    s_nop 1
    v_permlane16_swap_b32 v{X}, v{X+1}
    v_max_f32 v{X+2}, v{X}, v{X+1}
    v_max_f32 v{X}, v{X}, v{X+1}
    s_nop 1
    v_permlane32_swap_b32 v{X}, v{X+2}
    v_max_f32 v{X}, v{X}, v{X+2}
    v_mul_f32 v{X}, s{sCB}, v{X}''')
    for i in range(10): a(f'v_fma_f32 v{S0+i}, v{S0+i}, s{sCB}, -v{X}')
    for i in range(10): a(f'v_exp_f32 v{S0+i}, v{S0+i}')
    for r in range(4): a(f'v_cvt_pk_bf16_f32 v{PB+r}, v{S0+2*r}, v{S0+2*r+1}')
    a(f'v_cvt_pk_bf16_f32 v{PW+2}, v{SM}, v{SM+1}\nv_cvt_pk_bf16_f32 v{PW+9}, v{SM}, v{SM+1}')
    a.wv('vm')
    win = [PW+2, PW+8, PW, PW+6]
    sm = [f'v_add_f32 v{S0+i}, v{S0+i}, v{S0+5+i}' for i in range(5)] + [f'v_add_f32 v{S0}, v{S0}, v{S0+1}', f'v_add_f32 v{S0+2}, v{S0+2}, v{S0+3}',
          f'v_add_f32 v{S0}, v{S0}, v{S0+4}', f'v_add_f32 v{X}, v{S0}, v{S0+2}', f'v_add_f32 v{X+1}, v{S0}, v{S0+2}']
    for t in range(4):
        a(mf16(OT+4*t, vr(VXF+4*t, 4), vr(PB, 4), '0'))
        for x in sm[2*t:2*t+2]: a(x)
    for t in range(4):
        a(mf16(OT+4*t, vr(VM, 4), vr(win[t], 4), vr(OT+4*t, 4)))
        if t == 0: a(sm[8]); a(sm[9])
        if t == 1: a(f's_nop 0\nv_permlane16_swap_b32 v{X}, v{X+1}')
        if t == 2: a(f'v_add_f32 v{X+2}, v{X}, v{X+1}\nv_add_f32 v{X}, v{X}, v{X+1}')
    a(f'''s_nop 0
    v_permlane32_swap_b32 v{X}, v{X+2}
    v_add_f32 v{X}, v{X}, v{X+2}
    v_rcp_f32 v{X}, v{X}
    s_lshl_b32 s{S_T0}, s{sI}, 10
    v_add_u32 v{X+1}, s{S_T0}, v{vOA}
    v_mul_f32 v{X}, v{X}, v{vT+4}''')
    a.ds(f'ds_read_b128 {vr(AF_+32,4)}, v{X+1}')
    for w2 in range(2):
        b = OT+8*w2
        for r in range(8): a(f'v_mul_f32 v{b+r}, v{b+r}, v{X}')
        for r in range(4): a(f'v_cvt_pk_bf16_f32 v{PK+4*w2+r}, v{b+r}, v{b+4+r}')
        a.ds(f'ds_write_b128 v{vOW}, {vr(PK+4*w2,4)} offset:{w2*64}')
    a.wl0()
    a('s_barrier')
    for ks in range(8):
        a.ds(f'ds_read_b128 {vr(AF_+4*ks,4)}, v{vOR} offset:{ks*32}', ('o', ks))
    a(f'''s_lshl_b32 s{sA}, s{sSEG}, 5
    s_add_u32 s{sA}, s{sA}, s{sH}
    s_lshl_b32 s{sFL}, s{sA}, 2
    s_add_u32 s{sFL}, s{sFL}, {PF}
    s_lshl_b32 s{sA}, s{sA}, 15
    s_add_u32 s{sA}, s{sA}, {PART}
    s_add_u32 s{sB}, s{sA}, 8192
    s_add_u32 s{sC}, s{sA}, 16384
    s_add_u32 s{sD}, s{sA}, 24576''')
    for nu in range(4): a(mf32(16*nu, vr(AF_+32, 4), wo_reg(8, nu), '0'))
    for ks in range(8):
        a.wl(('o', ks))
        for nu in range(4): a(mf32(16*nu, vr(AF_+4*ks, 4), wo_reg(ks, nu), vr(16*nu, 16)))
    a('s_nop 7\ns_nop 3')
    for i in range(16):
        o = AF_+2*i
        a(f'v_cvt_pk_bf16_f32 v{o}, v{i}, v{16+i}\nv_cvt_pk_bf16_f32 v{o+1}, v{32+i}, v{48+i}')
        a(f'buffer_store_dwordx2 {vr(o,2)}, v{vPS}, {WS}, s{sA+(i>>2)} offen offset:{(i&3)*1024} sc0 sc1')
    a(f'''s_mov_b32 s{sPREV}, s{sSEG}
    s_add_u32 s{sI}, s{sI}, 1
    s_add_u32 s{sSEG}, s{sSEG}, 7
    s_waitcnt vmcnt(0)
    s_barrier''')
    flag(a, sFL, 0)
    a(f's_cmp_lt_u32 s{sSEG}, 64\ns_cbranch_scc1 L_p3')
    a.vq = []; a.dq = []

def rest(a, mode, prof):
    p2_setup(a)
    stamp(a, prof, 3)
    p2_loop(a)
    stamp(a, prof, 4)
    p3_setup(a)
    p3_loop(a)
    stamp(a, prof, 5)
    reduce_(a)
    stamp(a, prof, 6)
    a('s_waitcnt vmcnt(0)\ns_endpgm')
```

```python
import sys
from ga import *
import gr
NAME = 'gated_mix__mha_block__memory_aug_recurrent_mem_tr__prompt'
def build(mode='full', prof=None):
    a = Asm()
    prologue(a)
    a(f's_cmp_lt_u32 s{S_SLOT}, 32\ns_cbranch_scc1 L_role_r')
    if mode == 'ronly':
        a(f'''s_cmp_eq_u32 s{S_SLOT}, 32
        s_cbranch_scc0 L_x
        v_mov_b32 v1, 1
        buffer_store_dword v1, off, s[{R_DBG}:{R_DBG+3}], 0 offset:{D_INIT} sc0 sc1
        s_waitcnt vmcnt(0)
        L_x:
        s_endpgm''')
    else:
        import gw
        gw.w_role(a, mode, prof)
    overflow(a)
    gr.r_role(a, prof)
    k = NAME + '_kernel'
    return f'''; @launch grid=(256,1,1) block=(256,1,1) lds=163840
.amdgcn_target "amdgcn-amd-amdhsa--gfx950"
.text
.globl {k}
.p2align 8
.type {k},@function
{k}:
{a.text()}
.section .rodata,"a"
.p2align 6
.amdhsa_kernel {k}
  .amdhsa_next_free_vgpr 512
  .amdhsa_next_free_sgpr 102
  .amdhsa_accum_offset 256
  .amdhsa_group_segment_fixed_size 0
  .amdhsa_kernarg_size 112
  .amdhsa_user_sgpr_count 2
  .amdhsa_user_sgpr_kernarg_segment_ptr 1
  .amdhsa_system_sgpr_workgroup_id_x 1
.end_amdhsa_kernel
'''
if __name__ == '__main__':
    mode = sys.argv[1]; prof = int(sys.argv[3]) if len(sys.argv) > 3 else None
    open(sys.argv[2], 'w').write(build(mode, prof))
```

```python
class Asm:
    def __init__(s):
        s.L = []; s.dq = []; s.vq = []; s.nl = 0
    def __call__(s, txt):
        for l in txt.strip().split('\n'):
            l = l.strip()
            if l: s.L.append(l)
    def lab(s, p='L'):
        s.nl += 1; return f'{p}_{s.nl}'
    def ds(s, txt, tag=None):
        s(txt); s.dq.append(tag)
    def vm(s, txt, tag=None):
        s(txt); s.vq.append(tag)
    def _w(s, q, tags, mx):
        idx = -1
        for i, t in enumerate(q):
            if t in tags: idx = i
        if idx < 0: return None
        n = len(q) - 1 - idx
        n = min(n, mx)
        del q[:len(q) - n]
        return n
    def wl(s, *tags):
        n = s._w(s.dq, tags, 15)
        if n is not None: s(f's_waitcnt lgkmcnt({n})')
    def wv(s, *tags):
        n = s._w(s.vq, tags, 63)
        if n is not None: s(f's_waitcnt vmcnt({n})')
    def wl0(s):
        s('s_waitcnt lgkmcnt(0)'); s.dq = []
    def wv0(s):
        s('s_waitcnt vmcnt(0)'); s.vq = []
    def w0(s):
        s('s_waitcnt vmcnt(0) lgkmcnt(0)'); s.vq = []; s.dq = []
    def text(s):
        return '\n'.join(s.L) + '\n'

def vr(b, n=1, p='v'):
    return f'{p}{b}' if n == 1 else f'{p}[{b}:{b+n-1}]'
def ar(b, n=1):
    return vr(b, n, 'a')
def sr(b, n=1):
    return vr(b, n, 's')

KVF, KMF, PF, AF = 0x0, 0x2000, 0x4000, 0x6000
FLG_BYTES = 0x8000
TIM = 0x8000
HOP2, HOP1 = 0x10000, 0x40000
KM = 0x100000
AKV = 0x900000
KVX = 0x1000000
PART = 0x3000000
WS_BYTES = 0x10000000
D_TEAM, D_INIT = 4, 192
S_X, S_WQKV, S_WOA, S_MEM0, S_WQ, S_WK, S_WV, S_WO, S_GATE, S_OUT, S_DBG, S_WS = 8, 10, 12, 16, 18, 20, 22, 24, 28, 30, 32, 34
R_WS, R_DBG, R_A, R_B = 36, 40, 44, 48
S_W, S_SLOT, S_XCC, S_T0, S_T1, S_T2, S_T3, S_SPIN = 3, 4, 5, 52, 53, 54, 55, 56
S_LO, S_HI = 57, 58
SPIN_MAX = 1 << 19

def srd(a, r, p, n):
    a(f's_mov_b32 s{r}, s{p}\ns_mov_b32 s{r+1}, s{p+1}\ns_mov_b32 s{r+2}, {n}\ns_mov_b32 s{r+3}, 0x20000')

def spin(a, back):
    a(f's_sub_u32 s{S_SPIN}, s{S_SPIN}, 1\ns_cmp_lg_u32 s{S_SPIN}, 0\ns_cbranch_scc1 {back}\ns_endpgm')

def prologue(a):
    a(f'''s_cmp_ge_u32 s2, 256
    s_cbranch_scc0 L_go
    s_endpgm
    L_go:
    s_load_dwordx16 s[8:23], s[0:1], 0
    s_load_dwordx8 s[24:31], s[0:1], 64
    s_load_dwordx4 s[32:35], s[0:1], 96
    s_getreg_b32 s{S_XCC}, hwreg(HW_REG_XCC_ID)
    v_lshrrev_b32 v1, 6, v0
    v_and_b32 v0, 63, v0
    s_and_b32 s{S_XCC}, s{S_XCC}, 7
    v_readfirstlane_b32 s{S_W}, v1
    s_mov_b32 s{S_SPIN}, {SPIN_MAX}
    s_mov_b32 s{S_LO}, 0x05040100
    s_mov_b32 s{S_HI}, 0x07060302
    s_lshl_b32 s{S_T0}, s{S_XCC}, 2
    s_add_u32 s{S_T0}, s{S_T0}, 128
    s_cmp_eq_u32 s{S_XCC}, 0
    s_cselect_b32 s{S_T0}, 0, s{S_T0}
    s_waitcnt lgkmcnt(0)''')
    srd(a, R_WS, S_WS, WS_BYTES); srd(a, R_DBG, S_DBG, 256)
    a(f'''s_cmp_lg_u32 s{S_W}, 0
    s_cbranch_scc1 L_rank_wait
    s_mov_b32 s{S_SLOT}, 1
    s_atomic_add s{S_SLOT}, s[{S_DBG}:{S_DBG+1}], s{S_T0} glc
    s_waitcnt lgkmcnt(0)
    s_cmp_lt_u32 s{S_SLOT}, 32
    s_cbranch_scc0 L_overflow
    s_lshl_b32 s{S_T0}, s{S_XCC}, 5
    s_add_u32 s{S_SLOT}, s{S_SLOT}, s{S_T0}
    L_have_slot:
    v_mov_b32 v1, 0
    v_mov_b32 v2, s{S_SLOT}
    ds_write_b32 v1, v2
    s_waitcnt lgkmcnt(0)
    L_rank_wait:
    s_barrier
    v_mov_b32 v1, 0
    ds_read_b32 v2, v1
    s_waitcnt lgkmcnt(0)
    v_readfirstlane_b32 s{S_SLOT}, v2
    s_barrier
    s_cmp_lt_u32 s{S_SLOT}, 256
    s_cbranch_scc1 L_slot_ok
    s_endpgm
    L_slot_ok:''')

def overflow(a):
    a(f'''L_overflow:
    v_lshlrev_b32 v1, 2, v0
    v_add_u32 v1, 128, v1
    v_cmp_eq_u32 vcc, 0, v0
    s_nop 1
    v_cndmask_b32 v1, v1, 0, vcc
    L_ovf_poll:
    buffer_load_dword v2, v1, s[{R_DBG}:{R_DBG+3}], 0 offen sc0 sc1
    s_waitcnt vmcnt(0)
    s_mov_b32 s{S_T0}, 0''')
    for y in range(8):
        a(f'v_readlane_b32 s{60+y}, v2, {y}')
    for y in range(8):
        a(f's_add_u32 s{S_T0}, s{S_T0}, s{60+y}')
    a(f's_cmp_eq_u32 s{S_T0}, 256\ns_cbranch_scc1 L_ovf_all')
    a(f's_sub_u32 s{S_SPIN}, s{S_SPIN}, 1\ns_cmp_lg_u32 s{S_SPIN}, 0\ns_cbranch_scc1 L_ovf_poll\nL_ovf_bad:\ns_movk_i32 s{S_SLOT}, 256\ns_branch L_have_slot')
    a(f'L_ovf_all:\ns_sub_u32 s{S_SLOT}, s{S_SLOT}, 32')
    for y in range(7):
        a(f'''s_max_u32 s{S_T0}, s{60+y}, 32
        s_sub_u32 s{S_T0}, s{S_T0}, 32
        s_cmp_gt_u32 s{S_XCC}, {y}
        s_cselect_b32 s{S_T0}, s{S_T0}, 0
        s_add_u32 s{S_SLOT}, s{S_SLOT}, s{S_T0}''')
    for y in range(8):
        a(f'''s_min_u32 s{S_T0}, s{60+y}, 32
        s_sub_u32 s{S_T1}, 32, s{S_T0}
        s_add_u32 s{S_T2}, s{S_T0}, {32*y}
        s_cmp_lt_u32 s{S_SLOT}, s{S_T1}
        s_cbranch_scc1 L_ovf_found
        s_sub_u32 s{S_SLOT}, s{S_SLOT}, s{S_T1}''')
    a(f'''s_branch L_ovf_bad
    L_ovf_found:
    s_add_u32 s{S_SLOT}, s{S_SLOT}, s{S_T2}
    s_branch L_have_slot''')

def wait_init(a):
    l = a.lab('L_init')
    a(f'''v_mov_b32 v1, {D_INIT}
    {l}:
    buffer_load_dword v2, v1, s[{R_DBG}:{R_DBG+3}], 0 offen sc0 sc1
    s_waitcnt vmcnt(0)
    v_readfirstlane_b32 s{S_T0}, v2
    s_cmp_lg_u32 s{S_T0}, 0
    s_cbranch_scc1 {l}_ok''')
    spin(a, l)
    a(f'{l}_ok:')
    a.vq = []
```

```python
from ga import *
L_MEM, L_KX, L_QK, L_SEL, L_O, L_W = 0, 8192, 24576, 29184, 30208, 32768
MA, SB, QA, VA, VB, ON, VX, WV = 0, 32, 64, 80, 88, 104, 112, 128
vIDX, vAA, vL16, vSB, vQW, vQR, vKR, vOW = range(120, 128)
vH1S, vH2S, vM1, vM3, vMW, vKE = 91, 95, 99, 103, 107, 111
sH, sS, sKV, sKM, sH1L, sH2, sH1S, sRDY, sODD, sX2, sC, sFL, sKXM, sROT, sBND = 60, 61, 62, 63, 64, 65, 66, 68, 70, 72, 74, 75, 76, 59, 6
PA, PB, FR = 0, 8, 16
OPT = dict(sets=1, mask=1)
WS = f's[{R_WS}:{R_WS+3}]'
PROF = 78

def drow(ks, hi, r):
    return 64*ks + 32*hi + 8*(r & 1) + 2*(r >> 1)
def drow2(ks, hi, r):
    return 64*ks + 32*hi + 16*(r & 1) + 2*(r >> 1)

WPOS = [(0,0),(1,0),(2,0),(3,0),(0,1),(1,1),(2,1),(3,1),(4,0),(5,0),(4,1),(5,1),(6,0),(7,0),(6,1),(7,1)]
def smf(d, A, B, abid=0):
    return f'v_smfmac_f32_16x16x64_bf16 {vr(d,4)}, {vr(A,4)}, {B}, v{vIDX}' + (' abid:1' if abid else '')

def r_setup(a):
    a(f's_mov_b32 s{sH}, s{S_SLOT}')
    a(f'''v_and_b32 v1, 15, v0
    v_lshrrev_b32 v2, 4, v0
    v_lshlrev_b32 v{vL16}, 4, v0
    s_lshl_b32 s{S_T0}, s{S_W}, 11
    v_add_u32 v{vMW}, s{S_T0}, v{vL16}
    s_lshl_b32 s{S_T0}, s{S_W}, 15
    s_add_u32 s{S_T0}, s{S_T0}, {L_W}
    v_add_u32 v{vSB}, s{S_T0}, v{vL16}
    v_lshrrev_b32 v3, 1, v2
    v_and_b32 v4, 1, v2
    v_lshlrev_b32 v5, 4, v3
    v_lshl_add_u32 v5, v4, 2, v5
    v_lshlrev_b32 v12, 2, v3
    v_lshl_add_u32 v12, v4, 3, v12
    s_lshl_b32 s{sROT}, s{S_W}, 20''')
    a(f'''s_lshl_b32 s{S_T0}, s{sH}, 8
    s_and_b32 s{S_T1}, s{S_W}, 1
    s_lshl_b32 s{S_T1}, s{S_T1}, 7
    s_add_u32 s{S_T1}, s{S_T1}, s{S_T0}
    v_lshlrev_b32 v6, 13, v12
    v_lshl_add_u32 v116, v1, 3, v6
    v_add_u32 v116, s{S_T1}, v116
    s_lshl_b32 s{S_T1}, s{S_W}, 6
    s_add_u32 s{S_T1}, s{S_T1}, s{S_T0}
    v_lshl_add_u32 v117, v1, 2, v6
    v_add_u32 v117, s{S_T1}, v117
    s_lshl_b32 s{S_T0}, s{sH}, 17
    s_lshl_b32 s{S_T1}, s{S_W}, 8
    s_add_u32 s{S_T1}, s{S_T1}, s{S_T0}
    v_lshlrev_b32 v6, 10, v5
    v_lshl_add_u32 v118, v1, 4, v6
    v_add_u32 v118, s{S_T1}, v118
    s_cmp_lt_u32 s{S_W}, 2
    s_cselect_b32 s{R_A}, s{S_WQ}, s{S_WK}
    s_cselect_b32 s{R_A+1}, s{S_WQ+1}, s{S_WK+1}
    s_mov_b32 s{R_A+2}, {512*8192}
    s_mov_b32 s{R_A+3}, 0x20000''')
    srd(a, R_B, S_WV, 512*8192)
    a(f'''s_lshl_b32 s{sH1L}, s{sH}, 13
    s_add_u32 s{sH1L}, s{sH1L}, {HOP1}
    s_lshl_b32 s{sH1S}, s{sH}, 6
    s_add_u32 s{sH1S}, s{sH1S}, {HOP1}
    s_add_u32 s{sH1S+1}, s{sH1S}, 8192
    s_mov_b32 s{sH2}, {HOP2}
    s_lshl_b32 s{S_T0}, s{sH}, 2
    s_add_u32 s{S_T0}, s{S_T0}, s{S_W}
    s_lshl_b32 s{S_T0}, s{S_T0}, 6
    v_bfe_u32 v6, v1, 1, 1
    v_lshlrev_b32 v7, 5, v6
    v_lshl_add_u32 v7, v3, 4, v7
    v_and_b32 v6, 1, v1
    v_lshl_add_u32 v7, v6, 3, v7
    v_lshl_add_u32 v7, v4, 2, v7
    v_add_u32 v119, s{S_T0}, v7
    v_mov_b64 v[8:9], 0
    v_mov_b64 v[10:11], 0''')
    a.vm(f'buffer_store_dwordx4 v[8:11], v{vMW}, {WS}, s{sH1L} offen sc0 sc1')
    a.vm(f'buffer_store_dwordx4 v[8:11], v{vMW}, {WS}, s{sH1L} offen offset:1024 sc0 sc1')
    a.vm(f'buffer_store_dword v8, v119, {WS}, s{sH2} offen sc0 sc1')

def r_weights(a):
    RA, RB = f's[{R_A}:{R_A+3}]', f's[{R_B}:{R_B+3}]'
    chunks = []
    def qk_load(ks, st):
        for hi in range(2):
            for r in range(4):
                for e in range(2):
                    a(f's_xor_b32 s{S_T0}, s{sROT}, {(drow2(ks,hi,r)+e)*8192}')
                    a.vm(f'buffer_load_dwordx2 {vr(st+(hi*4+r)*4+2*e,2)}, v116, {RA}, s{S_T0} offen', ('q', ks))
    def qk_fin(ks, st):
        a.wv(('q', ks))
        for j in range(8):
            b = st + j*4
            a(f'v_perm_b32 v104, v{b+2}, v{b}, s{S_LO}\nv_perm_b32 v105, v{b+2}, v{b}, s{S_HI}\nv_perm_b32 v106, v{b+3}, v{b+1}, s{S_LO}')
            a(f'v_perm_b32 v{96+j}, v{b+3}, v{b+1}, s{S_HI}')
            for t in range(3):
                a(f'v_accvgpr_write_b32 a{(ks*3+t)*8+j}, v{104+t}')
        a.ds(f'ds_write_b128 v{vSB}, v[96:99] offset:{ks*2048}')
        a.ds(f'ds_write_b128 v{vSB}, v[100:103] offset:{ks*2048+1024}')
        a.wl0()
    def v_load(ks):
        for hi in range(2):
            for r in range(4):
                for e in range(2):
                    a(f's_xor_b32 s{S_T0}, s{sROT}, {(drow2(ks,hi,r)+e)*8192}')
                    a.vm(f'buffer_load_dword v{WV+(ks*2+e)*8+hi*4+r}, v117, {RB}, s{S_T0} offen', ('v', ks))
    def v_fin(ks):
        a.wv(('v', ks))
        for j in range(8):
            x, y = WV+ks*16+j, WV+ks*16+8+j
            a(f'v_perm_b32 v104, v{y}, v{x}, s{S_LO}\nv_perm_b32 v{y}, v{y}, v{x}, s{S_HI}\nv_mov_b32 v{x}, v104')
    def o_load(ks, hi, st):
        for r in range(4):
            for e in range(2):
                a(f's_mov_b32 s{S_T0}, {(drow(ks,hi,r)+e)*1024}')
                a.vm(f'buffer_load_dwordx4 {vr(st+r*8+e*4,4)}, v118, {RA}, s{S_T0} offen', ('o', ks, hi))
    def o_fin(ks, hi, st):
        a.wv(('o', ks, hi))
        for t in range(8):
            pos = WPOS.index((t, ks))
            inl = pos < 4 or pos >= 12
            for r in range(4):
                b = st + r*8 + (t >> 1)
                sel = S_HI if t & 1 else S_LO
                d = 96 + (t & 1)*4 + r
                a(f'v_perm_b32 v{d}, v{b+4}, v{b}, s{sel}')
                if not inl:
                    idx = pos-4
                    a(f'v_accvgpr_write_b32 a{192+idx*8+hi*4+r}, v{d}')
            if inl:
                slot = 8+(pos if pos < 4 else pos-8)
                a.ds(f'ds_write_b128 v{vSB}, {vr(96+(t&1)*4,4)} offset:{slot*2048+hi*1024}')
                if t & 1: a.wl0()
    qk_load(0, 0); v_load(0); qk_load(1, 32)
    for ks in range(8):
        if ks+1 < 8: v_load(ks+1)
        qk_fin(ks, (ks % 3)*32)
        if ks+2 < 8: qk_load(ks+2, ((ks+2) % 3)*32)
        if ks == 6:
            srd(a, R_A, S_WO, 32*131072)
            o_load(0, 0, 64)
        if ks == 7:
            o_load(0, 1, 0); o_load(1, 0, 32)
        v_fin(ks)
    o_fin(0, 0, 64); o_load(1, 1, 64); o_fin(0, 1, 0); o_fin(1, 0, 32); o_fin(1, 1, 64)

def r_consts(a):
    a(f"""v_mov_b32 v{vH2S}, v119
    v_lshrrev_b32 v0, 4, v{vL16}
    v_and_b32 v1, 15, v0
    v_lshrrev_b32 v2, 4, v0
    v_lshrrev_b32 v3, 1, v2
    v_and_b32 v4, 1, v2
    v_lshrrev_b32 v5, 2, v1
    v_and_b32 v6, 1, v1
    v_lshl_add_u32 v5, v5, 1, v6
    v_bfe_u32 v16, v1, 1, 1
    v_lshlrev_b32 v{vAA}, 9, v3
    v_lshl_add_u32 v{vAA}, v5, 6, v{vAA}
    v_lshl_add_u32 v{vAA}, v4, 5, v{vAA}
    v_lshl_add_u32 v{vAA}, v16, 4, v{vAA}
    s_mov_b32 s{sODD}, 0xcccccccc
    s_mov_b32 s{sODD+1}, 0xcccccccc
    s_mov_b32 s{sX2}, 0x000f000f
    s_mov_b32 s{sX2+1}, 0x000f000f
    v_mov_b32 v7, 0x44444444
    v_mov_b32 v8, 0x4e4eeeee
    v_cndmask_b32 v{vIDX}, v7, v8, s[{sODD}:{sODD+1}]
    v_mov_b32 v7, 0x0000ffff
    v_mov_b32 v8, 0xffff0000
    v_cndmask_b32 v7, v7, v8, s[{sODD}:{sODD+1}]
    v_cmp_gt_u32 vcc, 32, v0
    s_movk_i32 s{S_T2}, 288
    s_lshr_b32 s{S_T0}, s{S_W}, 1
    v_cndmask_b32 v{vM1}, 0, v7, vcc
    v_cndmask_b32 v{vM3}, v7, 0, vcc
    s_mul_i32 s{S_T0}, s{S_T0}, {8*288}
    s_and_b32 s{S_T1}, s{S_W}, 1
    s_lshl_b32 s{S_T1}, s{S_T1}, 7
    s_add_u32 s{S_T0}, s{S_T0}, s{S_T1}
    s_add_u32 s{S_T0}, s{S_T0}, {L_QK}
    v_mul_lo_u32 v7, v2, s{S_T2}
    v_lshlrev_b32 v7, 1, v7
    v_lshl_add_u32 v7, v1, 3, v7
    v_add_u32 v{vQW}, s{S_T0}, v7
    v_mul_lo_u32 v7, v5, s{S_T2}
    v_lshl_add_u32 v7, v2, 4, v7
    v_add_u32 v{vQR}, {L_QK}, v7
    v_lshrrev_b32 v7, 3, v1
    v_bfe_u32 v8, v1, 2, 1
    v_lshl_add_u32 v7, v8, 1, v7
    v_lshl_add_u32 v7, v7, 1, v6
    v_mul_lo_u32 v7, v7, s{S_T2}
    v_lshl_add_u32 v7, v2, 4, v7
    v_add_u32 v{vKR}, {L_QK+8*288}, v7
    s_lshl_b32 s{S_T0}, s{S_W}, 6
    s_add_u32 s{S_T0}, s{S_T0}, {L_QK+8*288}
    v_lshrrev_b32 v7, 3, v0
    v_mul_lo_u32 v7, v7, s{S_T2}
    v_and_b32 v8, 7, v0
    v_lshl_add_u32 v7, v8, 3, v7
    v_add_u32 v{vKE}, s{S_T0}, v7
    s_lshl_b32 s{S_T0}, s{S_W}, 9
    s_add_u32 s{S_T0}, s{S_T0}, {L_O}
    v_lshlrev_b32 v7, 7, v2
    v_lshl_add_u32 v7, v1, 2, v7
    v_add_u32 v{vOW}, s{S_T0}, v7
    v_lshrrev_b32 v7, 2, v1
    v_lshlrev_b32 v8, 14, v7
    v_lshl_add_u32 v8, v2, 11, v8
    v_and_b32 v9, 3, v1
    v_lshl_add_u32 v8, v9, 4, v8
    s_lshl_b32 s{S_T0}, s{S_W}, 16
    v_add_u32 v{vH1S}, s{S_T0}, v8
    v_mov_b32 v10, 0x3f80
    v_mov_b32 v11, 0x3f800000
    v_cmp_eq_u32 vcc, 1, v6
    s_nop 1
    v_cndmask_b32 v10, v10, v11, vcc
    v_cmp_gt_u32 vcc, 2, v9
    s_nop 1
    v_cndmask_b32 v10, 0, v10, vcc""")
    for r in range(4):
        a(f'v_cmp_eq_u32 vcc, {r}, v7\ns_nop 1\nv_cndmask_b32 v{12+r}, 0, v10, vcc')
    a.ds(f'ds_write_b128 v{vL16}, v[12:15] offset:{L_SEL}')
    for r in (0, 1, 2, 4, 5, 6):
        a(f'v_mov_b32 v{ON+r}, 0x3f803f80')
    srd(a, R_B, S_MEM0, 8192)
    a(f"""s_lshl_b32 s{S_T0}, s{S_W}, 8
    v_lshlrev_b32 v9, 10, v5
    v_lshl_add_u32 v9, v3, 6, v9
    v_lshl_add_u32 v9, v16, 5, v9
    v_lshl_add_u32 v9, v4, 3, v9""")
    for b in range(2):
        for i in range(2):
            a.vm(f'buffer_load_dwordx2 {vr(24+4*b+2*i,2)}, v9, s[{R_B}:{R_B+3}], s{S_T0} offen offset:{128*b+16*i}')
    a(f"""s_mov_b32 s{sC}, {hex(C_B)}
    s_mov_b32 s{sBND}, {hex(BND)}
    s_mov_b32 s{sS}, 0
    s_lshl_b32 s{S_T0}, s{sH}, 14
    s_add_u32 s{sKV}, s{S_T0}, {KVX}
    s_lshl_b32 s{S_T0}, s{sH}, 2
    s_add_u32 s{S_T0}, s{S_T0}, s{S_W}
    s_lshl_b32 s{S_T0}, s{S_T0}, 10
    s_add_u32 s{sKM}, s{S_T0}, {KM-32*4096}
    s_lshl_b32 s{sFL}, s{sH}, 8
    s_add_u32 s{sFL}, s{sFL}, {KMF-8}
    s_lshl_b32 s{S_T0}, s{S_W}, 11
    s_add_u32 s{sKXM}, s{S_T0}, {L_KX}
    s_add_u32 s{sKXM+1}, s{S_T0}, {L_KX+8192}
    s_mov_b64 s[{sRDY}:{sRDY+1}], 0""")

import struct, math
C_B = struct.unpack('<I', struct.pack('<f', 128**-0.5 * math.log2(math.e)))[0]
BND = struct.unpack('<I', struct.pack('<f', 24.0))[0]

def r_team(a):
    a.w0()
    a(f'''s_barrier
    s_cmp_lg_u32 s{S_W}, 0
    s_cbranch_scc1 L_team_poll0
    s_cmp_eq_u32 s{S_XCC}, 0
    s_cselect_b32 s{S_T0}, 0x101, 1
    s_atomic_add s{S_T0}, s[{S_DBG}:{S_DBG+1}], {D_TEAM} glc
    s_waitcnt lgkmcnt(0)
    L_team_poll0:''')
    wait_init(a)
    a(f'''v_mov_b32 v1, {D_TEAM}
    L_team_poll:
    buffer_load_dword v2, v1, s[{R_DBG}:{R_DBG+3}], 0 offen sc0 sc1
    s_waitcnt vmcnt(0)
    v_readfirstlane_b32 s{S_T3}, v2
    s_and_b32 s{S_T0}, s{S_T3}, 0xff
    s_cmp_eq_u32 s{S_T0}, 32
    s_cbranch_scc1 L_team_ok''')
    spin(a, 'L_team_poll')
    a('L_team_ok:')

def need_kv(a, sidx, tmp=MA):
    l = a.lab('L_kv')
    a(f'''s_bitcmp1_b64 s[{sRDY}:{sRDY+1}], s{sidx}
    s_cbranch_scc1 {l}_ok
    s_lshl_b32 s{S_T1}, s{sH}, 8
    v_lshrrev_b32 v{tmp}, 2, v{vL16}
    {l}:
    buffer_load_dword v{tmp+1}, v{tmp}, {WS}, s{S_T1} offen sc1
    s_waitcnt vmcnt(0)
    v_cmp_ne_u32 s[{sRDY}:{sRDY+1}], 0, v{tmp+1}
    s_nop 4
    s_bitcmp1_b64 s[{sRDY}:{sRDY+1}], s{sidx}
    s_cbranch_scc1 {l}_ok''')
    spin(a, l)
    a(f'{l}_ok:')

def prefetch(p):
    return [f's_mov_b32 m0, s{sKXM+p}\ns_add_u32 s{S_T0}, s{sKV}, 8192\nbuffer_load_dwordx4 v{vMW}, {WS}, s{sKV} offen sc1 lds',
            f'buffer_load_dwordx4 v{vMW}, {WS}, s{sKV} offen offset:1024 sc1 lds',
            f'buffer_load_dwordx4 {vr(VX,4)}, v{vMW}, {WS}, s{S_T0} offen sc1',
            f'buffer_load_dwordx4 {vr(VX+4,4)}, v{vMW}, {WS}, s{S_T0} offen offset:1024 sc1\ns_add_u32 s{sKV}, s{sKV}, {32*16384}']

def sb_read(a, slot, pos, tag):
    a.ds(f'ds_read_b128 {vr(SB+pos*8,4)}, v{vSB} offset:{slot*2048}', tag)
    a.ds(f'ds_read_b128 {vr(SB+pos*8+4,4)}, v{vSB} offset:{slot*2048+1024}', tag)

def zero(a, b, n):
    for i in range(0, n, 2):
        a(f'v_mov_b64 {vr(b+i,2)}, 0')

def vx_to_vb(a):
    for T_ in range(2):
        a(f'v_mov_b64 {vr(VB+8*T_,2)}, {vr(VX+4*T_,2)}\nv_mov_b64 {vr(VB+8*T_+4,2)}, {vr(VX+4*T_+2,2)}')

def stage_export(a):
    a.ds(f'ds_read_b64 {vr(VX,2)}, v{vKE}', 'ke')
    a(f'v_mov_b32 v{VX+2}, v{VB+2}\nv_mov_b32 v{VX+3}, v{VB+10}')
EXPORT = f'buffer_store_dwordx4 {vr(VX,4)}, v{vL16}, {WS}, s{sKM} offen sc0 sc1\ns_add_u32 s{sKM}, s{sKM}, {32*4096}'

def r_first(a):
    need_kv(a, sS)
    for x in prefetch(0): a.vm(x)
    for i in range(4): sb_read(a, i, i, None)
    zero(a, QA, 24)
    a.w0()
    for i in range(0, 8, 2): a(f'v_mov_b64 {vr(PA+i,2)}, {vr(24+i,2)}')
    vx_to_vb(a)
    a(f'ds_write_b128 v{vMW}, {vr(PA,4)}\nds_write_b128 v{vMW}, {vr(PA+4,4)} offset:1024')

def pk(op, d, x, y): return f'v_pk_{op}_f32 {vr(d,2)}, {vr(x,2)}, {vr(y,2)}'

def own(a, R, first):
    def qk(i, t):
        a(smf(QA+4*t, R+4*i, ar((i*3+t)*8, 8) if t < 3 else vr(SB+i*8, 8)))
    for t in range(first, 4): qk(0, t)
    a(f'v_xor_b32 v{FR+4}, 2048, v{vMW}\nv_xor_b32 v{FR+12}, 4096, v{vMW}')
    a.wl0()
    a('s_barrier')
    qk(1, 0)
    for i in range(2, 4): a.ds(f'ds_read_b128 {vr(FR+4*(i-2),4)}, v{FR+4} offset:{(i&1)*1024}', ('A', i))
    qk(1, 1)
    for i in range(4, 6): a.ds(f'ds_read_b128 {vr(FR+4*(i-2),4)}, v{FR+12} offset:{(i&1)*1024}', ('A', i))
    qk(1, 2); qk(1, 3)
    sb_read(a, 4, 0, ('W', 4))
    for i in range(4):
        a(smf(VA+4*(i & 1), R+4*(i >> 1), vr(WV+i*8, 8)))
        if i == 0: sb_read(a, 5, 1, ('W', 5))

def r_step(a, p, fast, nm, prof=None):
    st = '' if fast else ' sc0 sc1'
    tag = (p+1) & 1
    pt = [1]
    def T():
        if prof is not None and p == prof:
            a(f's_memtime s[{PROF+2*pt[0]}:{PROF+2*pt[0]+1}]'); pt[0] += 1
    two = OPT['sets'] == 2
    if two:
        a(f'{nm}_B{p}:')
        a.dq = [None]; own(a, PB, 2)
        a(f's_branch {nm}_C{p}')
    if p == 0:
        a(f'{nm}_first:')
        for t in range(2): a(smf(QA+4*t, PA, ar(t*8, 8)))
    a(f'{nm}_A{p}:')
    a.dq = [None]; own(a, PA, 2)
    a(f'{nm}_C{p}:')
    a.vq = ['stale', 'stale']
    T()
    if prof == 3: a(f's_memtime s[{PROF+2}:{PROF+3}]')
    F = lambda i: FR+4*(i-2) if i < 6 else PA+4*(i-6)
    l = a.lab('L_nofl')
    pf = prefetch(1-p)
    for i in range(2, 8):
        a.wl(('A', i))
        for t in range(3):
            a(smf(QA+4*t, F(i), ar((i*3+t)*8, 8)))
            if i == 2 and t == 0: a.vm(EXPORT)
            if i == 2 and t == 1:
                a(f's_add_u32 s{S_T2}, s{sS}, 1')
                need_kv(a, S_T2, tmp=VX+4)
            if i == 3 and t == 0:
                a.wv('stale')
                a(f'v_xor_b32 v{PA+4}, 6144, v{vMW}')
                for j in range(6, 8): a.ds(f'ds_read_b128 {vr(F(j),4)}, v{PA+4} offset:{(j&1)*1024}', ('A', j))
            if i >= 4 and t == 0: a.vm(pf[i-4])
            if i == 3 and t == 2:
                a(f'''s_cmp_lg_u32 s{S_W}, 3
                s_cbranch_scc1 {l}
                s_cmp_lt_u32 s{sS}, 2
                s_cbranch_scc1 {l}
                s_mov_b64 exec, 1
                buffer_store_dword v{vIDX}, off, {WS}, s{sFL} sc0 sc1
                s_mov_b64 exec, -1
                {l}:
                s_add_u32 s{sFL}, s{sFL}, 4''')
                if prof == 3:
                    a(f'''s_waitcnt lgkmcnt(0)
                    s_add_u32 s{PROF+4}, s{sFL}, {0x80000+4-KMF}
                    v_mov_b32 v{VX+6}, s{PROF+2}
                    s_mov_b64 exec, 1
                    buffer_store_dword v{VX+6}, off, {WS}, s{PROF+4}
                    s_mov_b64 exec, -1''')
        a.wl(('W', i))
        a(smf(QA+12, F(i), vr(SB+(i & 3)*8, 8)))
        if i < 4: sb_read(a, i+4, i, ('W', i+4))
        else:
            for j in range(2):
                f = (i-4)*2+j
                a.ds(f'ds_read_b128 {vr(SB+4*f,4)}, v{vL16} offset:{L_KX+8192*p+(f&1)*4096+(f>>1)*1024}', ('K', f >> 1))
    T()
    def V(i):
        a(smf(VA+4*(i & 1), F(i >> 1), vr(WV+i*8, 8)))
    V(4)
    a(pk('add', QA, QA, QA+2)); a(pk('add', QA+4, QA+4, QA+6)); a(pk('add', QA+8, QA+8, QA+10))
    V(5)
    a(pk('add', QA+12, QA+12, QA+14))
    a(f'v_cvt_pk_bf16_f32 v{QA+2}, v{QA}, v{QA+4}\nv_cvt_pk_bf16_f32 v{QA+6}, v{QA+1}, v{QA+5}')
    V(6)
    a(f'v_cvt_pk_bf16_f32 v{QA+3}, v{QA+8}, v{QA+12}\nv_cvt_pk_bf16_f32 v{QA+7}, v{QA+9}, v{QA+13}')
    a.ds(f'ds_write2_b64 v{vQW}, {vr(QA+2,2)}, {vr(QA+6,2)} offset0:0 offset1:36')
    V(7)
    V(8); V(9); V(10); V(11)
    a.wl0()
    a('s_barrier')
    QF = FR
    KM_ = lambda kk: (PB if kk < 2 else PA-8)+4*kk
    def km(kk):
        a.ds(f'ds_read_b128 {vr(KM_(kk),4)}, v{vKR} offset:{kk*64}', ('M', kk))
    for kk in range(2):
        a.ds(f'ds_read_b128 {vr(QF+4*kk,4)}, v{vQR} offset:{kk*64}', ('Q', kk))
    V(12)
    for kk in range(2, 4):
        a.ds(f'ds_read_b128 {vr(QF+4*kk,4)}, v{vQR} offset:{kk*64}', ('Q', kk))
    V(13); km(0); km(1); V(14); km(2); V(15); km(3)
    T()
    S0, S1, SM, LA = QA+4, QA+8, QA, QA+12
    def sc(d, A, kk):
        a(f'v_mfma_f32_16x16x32_bf16 {vr(d,4)}, {vr(A,4)}, {vr(QF+4*kk,4)}, ' + ('0' if kk == 0 else vr(d, 4)))
    ve = [pk('add', VA, VA, VA+2), pk('add', VA+4, VA+4, VA+6),
          f'v_cvt_pk_bf16_f32 v{VB+2}, v{VA}, v{VA+1}', f'v_cvt_pk_bf16_f32 v{VB+10}, v{VA+4}, v{VA+5}',
          f'v_cvt_pk_bf16_f32 v{VB+6}, v{VA}, v{VA+1}', f'v_cvt_pk_bf16_f32 v{VB+14}, v{VA+4}, v{VA+5}'] + \
         [f'v_mov_b64 {vr(r,2)}, 0' for r in (VA, VA+2, VA+4, VA+6, LA, LA+2)]
    vi = [0]
    def fill(n):
        for x in ve[vi[0]:vi[0]+n]: a(x)
        vi[0] += n
    for kk in range(4):
        a.wl(('Q', kk), ('K', kk))
        sc(S0, SB+8*kk, kk)
        if kk > 0: fill(2)
        sc(S1, SB+8*kk+4, kk)
        if kk > 0: fill(2)
        if kk == 2 and p == 1:
            a(f's_cmp_eq_u32 s{sS}, 63\ns_cbranch_scc1 L_r_done')
    od = f's[{sODD}:{sODD+1}]'
    X = PB
    P = QF
    E = QF+4
    for kk in range(4):
        a.wl(('M', kk))
        sc(SM, KM_(kk), kk)
        if kk == 0:
            for i in range(2): sb_read(a, 8+i, i, ('O', i))
        if kk == 1:
            a(f'''v_cndmask_b32 v{X}, v{S0}, v{S0+2}, {od}
            v_cndmask_b32 v{X+1}, v{S0+1}, v{S0+3}, {od}''')
            sb_read(a, 10, 2, ('O', 2))
        if kk == 2:
            a(f'''v_cndmask_b32 v{X+2}, v{S1}, v{S1+2}, {od}
            v_cndmask_b32 v{X+3}, v{S1+1}, v{S1+3}, {od}
            v_mul_f32 v{X}, s{sC}, v{X}
            v_mul_f32 v{X+1}, s{sC}, v{X+1}''')
    a(f'''v_mul_f32 v{X+2}, s{sC}, v{X+2}
    v_mul_f32 v{X+3}, s{sC}, v{X+3}
    v_exp_f32 v{E}, v{X}
    v_exp_f32 v{E+1}, v{X+1}
    v_exp_f32 v{E+2}, v{X+2}
    v_exp_f32 v{E+3}, v{X+3}
    v_max3_f32 v{X+5}, |v{X}|, |v{X+1}|, |v{X+2}|
    v_cvt_pk_bf16_f32 v{P}, v{E}, v{E+1}''')
    T()
    a(f'''v_cndmask_b32 v{X+4}, v{SM}, v{SM+1}, {od}
    v_mul_f32 v{X+4}, s{sC}, v{X+4}
    v_exp_f32 v{E}, v{X+4}
    v_cvt_pk_bf16_f32 v{P+2}, v{E+2}, v{E+3}
    v_cvt_pk_bf16_f32 v{E}, v{E}, v{E}
    v_max3_f32 v{X+5}, |v{X+3}|, |v{X+4}|, v{X+5}
    v_and_b32 v{P+1}, v{E}, v{vM1}
    v_and_b32 v{P+3}, v{E}, v{vM3}
    v_cmp_nle_f32 vcc, v{X+5}, s{sBND}
    s_cbranch_vccnz {nm}_max{p}
    {nm}_pv{p}:''')
    T()
    a(smf(VA, P, vr(VB, 8), 1))
    sb_read(a, 11, 3, ('O', 3))
    a(smf(VA+4, P, vr(VB+8, 8), 1)); zero(a, PA, 4)
    a(smf(LA, P, vr(ON, 8), 1)); zero(a, PA+4, 6)
    a(f'''{pk('add', VA, VA, VA+2)}
    {pk('add', VA+4, VA+4, VA+6)}
    v_cvt_pk_bf16_f32 v{VA}, v{VA}, v{VA+4}
    v_cvt_pk_bf16_f32 v{VA+1}, v{VA+1}, v{VA+5}''')
    a.ds(f'ds_write2_b32 v{vOW}, v{VA}, v{VA+1} offset0:0 offset1:16')
    a(f'''{pk('add', LA, LA, LA+2)}
    v_rcp_f32 v{LA}, v{LA}
    v_rcp_f32 v{LA+1}, v{LA+1}''')
    zero(a, PA+10, 6)
    a.wl0()
    a('s_barrier')
    OA = QA
    a.ds(f'ds_read_b128 {vr(OA,4)}, v{vAA} offset:{L_O}', 'o0')
    a.ds(f'ds_read_b128 {vr(OA+4,4)}, v{vAA} offset:{L_O+1024}', 'o1')
    zero(a, PA+16, 16)
    T()
    OUT = VA
    tg = (lambda r: f'v_or_b32 v{r}, 1, v{r}') if tag else (lambda r: f'v_and_b32 v{r}, -2, v{r}')
    def epi(t):
        b = 4*t; o = OUT+4*(t >> 2)+((t >> 1) & 1)
        return [pk('add', b, b, b+2), pk('add', b+4, b+4, b+6), pk('mul', b, b, LA), pk('mul', b+4, b+4, LA),
                f'v_cvt_pk_bf16_f32 v{o}, v{b}, v{b+4}', f'v_cvt_pk_bf16_f32 v{o+2}, v{b+1}, v{b+5}'] + ([tg(o)] if t % 4 == 0 else [])
    e0, e2, e4, e6 = epi(0), epi(2), epi(4), epi(6)
    st0 = f'buffer_store_dwordx4 {vr(OUT,4)}, v{vH1S}, {WS}, s{sH1S} offen{st}'
    sh = {7: e0[0:2], 8: e0[2:4], 9: e0[4:7], 10: e2[0:3], 11: e2[3:6], 12: [st0], 13: e4[0:2], 14: e4[2:5], 15: e4[5:7]}
    for pos, (t, ks) in enumerate(WPOS):
        if pos == 0: a.wl('o0', ('O', 0))
        if pos == 4: a.wl('o1')
        if pos < 4 or pos >= 12:
            j = pos if pos < 4 else pos-8
            a.wl(('O', j))
            a(smf(4*t, OA+4*ks, vr(SB+8*(j & 3), 8)))
            if pos < 4: sb_read(a, 12+pos, pos, ('O', 4+pos))
        else:
            a(smf(4*t, OA+4*ks, ar(192+(pos-4)*8, 8)))
        for x in sh.get(pos, []): a(x)
    D, SEL, H1 = PA, PA+4, (FR, FR+8)
    a.ds(f'ds_read_b128 {vr(SEL,4)}, v{vL16} offset:{L_SEL}', 'sel')
    sb_read(a, 0, 0, None)
    zero(a, QA, 4)
    a('s_nop 0')
    for x in e6: a(x)
    a(f'buffer_store_dwordx4 {vr(OUT+4,4)}, v{vH1S}, {WS}, s{sH1S+1} offen{st}')
    T()
    l = a.lab('L_h1')
    def ld(R, so, mask):
        if mask and OPT['mask']: a('s_mov_b64 exec, vcc')
        a(f'''buffer_load_dwordx4 {vr(R,4)}, v{vMW}, {WS}, s{so} offen sc1
        buffer_load_dwordx4 {vr(R+4,4)}, v{vMW}, {WS}, s{so} offen offset:1024 sc1''')
        if mask and OPT['mask']: a('s_mov_b64 exec, -1')
    n = 2 if two else 0
    def chk1(R):
        a(f'''s_waitcnt vmcnt({n+1})
        v_mfma_f32_16x16x32_bf16 {vr(D,4)}, {vr(SEL,4)}, {vr(R,4)}, 0
        s_waitcnt vmcnt({n})
        v_mfma_f32_16x16x32_bf16 {vr(D,4)}, {vr(SEL,4)}, {vr(R+4,4)}, {vr(D,4)}
        v_bitop3_b32 v{PB}, v{R}, v{R+4}, 1 bitop3:{'0x80' if tag else '0xa8'}
        v_cmp_ne_u32 vcc, {tag}, v{PB}
        s_cbranch_vccz {l}_ok''')
    for i in range(1, 3): sb_read(a, i, i, None)
    zero(a, QA+4, 8)
    ld(H1[0], sH1L, 0)
    sb_read(a, 3, 3, None)
    zero(a, QA+12, 4); zero(a, VA, 8)
    a(f's_add_u32 s{sS}, s{sS}, 1')
    a.wl('sel')
    if two: ld(H1[1], sH1L, 0)
    a(f'{l}:')
    chk1(H1[0]); ld(H1[0], sH1L, 1)
    if two: chk1(H1[1]); ld(H1[1], sH1L, 1)
    spin(a, l)
    dpp = lambda d, n: f'v_add_f32_dpp v{d}, v{d}, v{d} row_ror:{n} row_mask:0xf bank_mask:0xf'
    a(f'{l}_ok:')
    vx_to_vb(a)
    a(f'''s_nop 1
    {dpp(D,4)}
    {dpp(D+1,4)}
    s_nop 0
    {dpp(D,8)}
    {dpp(D+1,8)}
    s_mov_b64 exec, s[{sX2}:{sX2+1}]
    v_cvt_pk_bf16_f32 v{D}, v{D}, v{D+1}
    {tg(D)}
    buffer_store_dword v{D}, v{vH2S}, {WS}, s{sH2} offen{st}
    s_mov_b64 exec, -1''')
    T()
    l = a.lab('L_h2')
    op = '0x80' if tag else '0xfe'
    TT = VX+4
    def chk2(R, win):
        a(f'''s_waitcnt vmcnt({n+1})
        ds_write_b128 v{vMW}, {vr(R,4)}
        {smf(QA, R, ar(0, 8))}
        v_bitop3_b32 v{TT}, v{R}, v{R+1}, v{R+2} bitop3:{op}
        s_waitcnt vmcnt({n})
        ds_write_b128 v{vMW}, {vr(R+4,4)} offset:1024
        v_bitop3_b32 v{TT+1}, v{R+3}, v{R+4}, v{R+5} bitop3:{op}
        v_bitop3_b32 v{TT}, v{TT}, v{R+6}, v{R+7} bitop3:{op}
        {smf(QA+4, R, ar(8, 8))}
        v_bitop3_b32 v{TT}, v{TT}, v{TT+1}, 1 bitop3:{'0x80' if tag else '0xa8'}
        v_cmp_ne_u32 vcc, {tag}, v{TT}
        s_cbranch_vccz {win}''')
        ld(R, sH2, 1)
        a('s_waitcnt lgkmcnt(0)\ns_nop 3')
        zero(a, QA, 8)
    ld(PA, sH2, 0)
    stage_export(a)
    a.wl0()
    if two: ld(PB, sH2, 0)
    T()
    a(f'{l}:')
    chk2(PA, f'{nm}_A{1-p}')
    if two: chk2(PB, f'{nm}_B{1-p}')
    spin(a, l)
    a(f'''{nm}_max{p}:
    v_max3_f32 v{X+5}, v{X}, v{X+1}, v{X+2}
    v_max3_f32 v{X+5}, v{X+5}, v{X+3}, v{X+4}
    s_nop 1
    v_max_f32_dpp v{X+6}, v{X+5}, v{X+5} quad_perm:[2,3,0,1] row_mask:0xf bank_mask:0xf
    v_max_f32_dpp v{X+5}, v{X+5}, v{X+5} quad_perm:[2,3,0,1] row_mask:0xf bank_mask:0xf
    s_nop 1
    v_permlane16_swap_b32 v{X+5}, v{X+6}
    v_max_f32 v{X+7}, v{X+5}, v{X+6}
    v_max_f32 v{X+5}, v{X+5}, v{X+6}
    s_nop 1
    v_permlane32_swap_b32 v{X+5}, v{X+7}
    v_max_f32 v{X+5}, v{X+5}, v{X+7}''')
    for i in range(5): a(f'v_sub_f32 v{X+i}, v{X+i}, v{X+5}')
    for i in (4, 0, 1, 2, 3): a(f'v_exp_f32 v{X+i}, v{X+i}')
    a(f'''v_cvt_pk_bf16_f32 v{X+4}, v{X+4}, v{X+4}
    v_cvt_pk_bf16_f32 v{P}, v{X}, v{X+1}
    v_cvt_pk_bf16_f32 v{P+2}, v{X+2}, v{X+3}
    v_and_b32 v{P+1}, v{X+4}, v{vM1}
    v_and_b32 v{P+3}, v{X+4}, v{vM3}
    s_nop 1
    s_branch {nm}_pv{p}''')
    a.dq = []; a.vq = []

def r_role(a, prof=None):
    a('L_role_r:')
    if prof is not None: a(f's_memtime s[{PROF+20}:{PROF+21}]')
    r_setup(a); r_weights(a); r_consts(a); r_team(a)
    r_first(a)
    if prof is not None: a(f's_memtime s[{PROF+22}:{PROF+23}]')
    a(f's_lshr_b32 s{S_T3}, s{S_T3}, 8\ns_cmp_eq_u32 s{S_T3}, 32\ns_cbranch_scc0 L_r_slow_first\ns_branch L_r_fast_first')
    for fast, nm in ((1, 'L_r_fast'), (0, 'L_r_slow')):
        r_step(a, 0, fast, nm, prof); r_step(a, 1, fast, nm, prof)
    a('L_r_done:\ns_waitcnt vmcnt(0)')
    stage_export(a)
    a.wl0()
    a(EXPORT)
    a(f'''s_waitcnt vmcnt(0)
    s_barrier
    s_mov_b64 exec, 1
    buffer_store_dword v{vIDX}, off, {WS}, s{sFL} sc0 sc1
    buffer_store_dword v{vIDX}, off, {WS}, s{sFL} offset:4 sc0 sc1''')
    if prof is not None:
        a(f's_memtime s[{PROF}:{PROF+1}]\ns_waitcnt lgkmcnt(0)\ns_lshl_b32 s{S_T0}, s{sH}, 2\ns_add_u32 s{S_T0}, s{S_T0}, s{S_W}\ns_lshl_b32 s{S_T0}, s{S_T0}, 6\ns_add_u32 s{S_T0}, s{S_T0}, {TIM}')
        for i in range(12):
            a(f'v_mov_b32 v1, s{PROF+2*i}\nbuffer_store_dword v1, off, {WS}, s{S_T0} offset:{4*i}')
        a(f'v_mov_b32 v1, s{S_SPIN}\nbuffer_store_dword v1, off, {WS}, s{S_T0} offset:48')
    a('s_waitcnt vmcnt(0)\ns_endpgm')
```

```python
from gw import *
L_PB, L_V = 32768, 64512
L_QX, L_OI, OST = 32768, 40960, 272
KR, S, NM, O, P, Q, VF, MX, vA0, vA1, ST = 0, 64, 112, 128, 144, 152, 156, 172, 174, 175, 192
WO8 = 240
def wo_reg(ks, nu):
    return ar(128+(ks*4+nu)*4, 4) if ks < 8 else vr(WO8+nu*4, 4)

def chunk_load(a, c):
    if c < 4:
        for k in range(4):
            for j in range(8):
                a(f's_mov_b32 s{S_T0}, {(32*(4*c+k)+j)*8192}')
                a(f'buffer_load_dword v{ST+k*8+j}, v{vW1}, {RA}, s{S_T0} offen')
    else:
        if c == 6: srd(a, R_A, S_WOA, 512*1024)
        for k in range(3):
            ks = 3*(c-4)+k
            for jj in range(8):
                if jj % 4 == 0:
                    if ks < 8: a(f's_lshl_b32 s{S_T0}, s{sH}, 17\ns_add_u32 s{S_T0}, s{S_T0}, {(16*ks+jj)*1024}')
                    else: a(f's_lshl_b32 s{S_T0}, s{sH}, 14\ns_add_u32 s{S_T0}, s{S_T0}, {jj*1024}')
                a(f'buffer_load_dwordx2 {vr(ST+k*16+jj*2,2)}, v{vW2}, {RB if ks < 8 else RA}, s{S_T0} offen offset:{(jj&3)*1024}')
def chunk_fin(a, c):
    if c < 4:
        for k in range(4):
            for r in range(4):
                x = ST+k*8+2*r; ks = 4*c+k
                a(f'''v_perm_b32 v{vT}, v{x+1}, v{x}, s{S_LO}
                v_perm_b32 v{vT+1}, v{x+1}, v{x}, s{S_HI}
                v_accvgpr_write_b32 a{ks*8+r}, v{vT}
                v_accvgpr_write_b32 a{ks*8+4+r}, v{vT+1}''')
    else:
        for k in range(3):
            ks = 3*(c-4)+k
            for r in range(4):
                x = ST+k*16+4*r
                for nu in range(4):
                    sel = S_HI if nu & 1 else S_LO
                    if ks < 8:
                        a(f'v_perm_b32 v{vT+nu}, v{x+2+(nu>>1)}, v{x+(nu>>1)}, s{sel}')
                    else:
                        a(f'v_perm_b32 v{WO8+nu*4+r}, v{x+2+(nu>>1)}, v{x+(nu>>1)}, s{sel}')
                if ks < 8:
                    for nu in range(4): a(f'v_accvgpr_write_b32 a{128+(ks*4+nu)*4+r}, v{vT+nu}')

def p2_setup(a):
    srd(a, R_A, S_WQ, 512*8192); srd(a, R_B, S_WO, 32*131072)
    a(f'''v_and_b32 v1, 31, v{vLANE}
    v_lshrrev_b32 v2, 5, v{vLANE}
    s_lshl_b32 s{S_T0}, s{S_W}, 8
    v_lshlrev_b32 v{vW2}, 13, v2
    v_lshl_add_u32 v{vW2}, v1, 3, v{vW2}
    v_add_u32 v{vW2}, s{S_T0}, v{vW2}
    s_mul_i32 s{sA}, s{S_W}, {16*1040}
    s_add_u32 s{sA}, s{sA}, {L_V}
    v_lshlrev_b32 v3, 8, v2
    v_lshl_add_u32 v3, v1, 4, v3
    v_add_u32 v4, 512, v3
    v_mov_b32 v5, 1024
    v_cmp_gt_u32 vcc, 16, v1
    v_mov_b32 v8, 0x3f803f80
    v_mov_b32 v9, 0x3f803f80
    v_cndmask_b32 v3, v5, v3, vcc
    v_cndmask_b32 v4, v5, v4, vcc
    v_add_u32 v{vA0}, s{sA}, v3
    v_add_u32 v{vA1}, s{sA}, v4
    v_mov_b32 v10, 0x3f803f80
    v_mov_b32 v11, 0x3f803f80
    v_and_b32 v5, 15, v1
    v_mul_u32_u24 v5, 1040, v5
    v_add_u32 v5, s{sA}, v5
    ds_write_b128 v5, v[8:11] offset:1024''')
    chunk_load(a, 0)
    a(f's_mov_b32 s{sSEG}, s{sT}\ns_mov_b32 s{sXB}, 0')
    x_dma(a, sSEG, sXB)
    a(f's_lshl_b32 s{sB}, s{sH}, 5\ns_add_u32 s{sB}, s{sB}, {AF}')
    poll(a, sB, 7)
    a(f'''s_lshl_b32 s{sB}, s{sH}, 17
    s_lshl_b32 s{S_T0}, s{S_W}, 14
    s_add_u32 s{sB}, s{sB}, s{S_T0}
    s_add_u32 s{sB}, s{sB}, {AKV}''')
    for j in range(16):
        if j and j % 4 == 0: a(f's_add_u32 s{sB}, s{sB}, 4096')
        a(f'buffer_load_dwordx4 {vr(KR+4*j,4)}, v{vL16}, {WS}, s{sB} offen offset:{(j&3)*1024} sc1')
    a(f's_add_u32 s{sB}, s{sB}, {65536-3*4096}')
    for j in range(16):
        a(f's_add_u32 m0, s{sA}, {j*1040}\ns_add_u32 s{S_T0}, s{sB}, {j*1024}')
        a(f'buffer_load_dwordx4 v{vL16}, {WS}, s{S_T0} offen sc1 lds')
    a(f's_mov_b32 s{sI}, 0')

def p2_loop(a):
    a(f'''L_p2:
    s_lshl_b32 s{S_T0}, s{sI}, 10
    v_add_u32 v{vT}, s{S_T0}, v{vL16}
    ds_read_b128 {vr(Q,4)}, v{vT} offset:{L_QA & 0xffff}
    s_waitcnt vmcnt(0)'''.replace(f'v_add_u32 v{vT}, s{S_T0}, v{vL16}', f's_add_u32 s{S_T0}, s{S_T0}, {L_QA & ~0xffff}\nv_add_u32 v{vT}, s{S_T0}, v{vL16}'))
    for c in range(1, 8):
        a(f's_cmp_eq_u32 s{sI}, {c}\ns_cbranch_scc1 L_ch{c}')
    a('L_ch_ret:')
    a.dq = []; a.vq = []
    a.wl0()
    q = vr(Q, 4); K = lambda j: vr(KR+4*j, 4)
    def vrd(j):
        a.ds(f'ds_read_b128 {vr(VF+(j&1)*8,4)}, v{vA0} offset:{j*1040}', ('v', j))
        a.ds(f'ds_read_b128 {vr(VF+(j&1)*8+4,4)}, v{vA1} offset:{j*1040}', ('v', j))
    def mx(j):
        b = S+(j % 3)*16
        for r in range(8):
            m = MX+(r & 1)
            if j == 0 and r < 2: a(f'v_max_f32 v{m}, v{b+2*r}, v{b+2*r+1}')
            else: a(f'v_max3_f32 v{m}, v{m}, v{b+2*r}, v{b+2*r+1}')
    for j in range(16):
        a(mf32(S+(j % 3)*16, K(j), q, '0'))
        if j == 1: vrd(0); a('s_nop 7')
        if j >= 2: mx(j-2)
    mx(14)
    a('s_nop 3')
    mx(15)
    a(f'''v_max_f32 v{MX}, v{MX}, v{MX+1}
    v_max_f32 v{MX+1}, v{MX}, v{MX}
    s_nop 1
    v_permlane32_swap_b32 v{MX}, v{MX+1}
    v_max_f32 v{MX}, v{MX}, v{MX+1}''')
    for r in range(16): a(f'v_sub_f32 v{NM+r}, 0, v{MX}')
    a('s_nop 1')
    nm = vr(NM, 16)
    a(mf32(S, K(0), q, nm))
    a('s_nop 7')
    for j in range(16):
        b = S+(j & 1)*16
        if j+1 < 16:
            a(mf32(S+((j+1) & 1)*16, K(j+1), q, nm))
            vrd(j+1)
        else: a('s_nop 0')
        ex = lambda r: a(f'v_exp_f32 v{b+r}, v{b+r}')
        cv = lambda r: a(f'v_cvt_pk_bf16_f32 v{P+r}, v{b+2*r}, v{b+2*r+1}')
        if j == 0: a('s_nop 1')
        for r in range(8): ex(r)
        ex(8)
        for r in range(4): cv(r)
        ex(9); ex(10)
        a.wl(('v', j))
        a(mf32(O, vr(VF+(j & 1)*8, 4), vr(P, 4), '0' if j == 0 else vr(O, 16)))
        for r in range(11, 16): ex(r)
        cv(4); cv(5); cv(6); cv(7)
        a('s_nop 1')
        a(mf32(O, vr(VF+(j & 1)*8+4, 4), vr(P+4, 4), vr(O, 16)))
    a(f'''s_and_b32 s{S_T0}, s{sI}, 1
    s_mul_i32 s{S_T0}, s{S_T0}, 10240
    s_add_u32 s{S_T0}, s{S_T0}, {L_PB}
    s_mul_i32 s{S_T1}, s{S_W}, 2560
    s_add_u32 s{S_T1}, s{S_T1}, s{S_T0}
    s_lshl_b32 s{S_T2}, s{S_W}, 9
    s_add_u32 s{S_T2}, s{S_T2}, s{S_T0}
    v_lshlrev_b32 v{vT}, 3, v{vLANE}
    v_add_u32 v{vT+1}, s{S_T1}, v{vT}
    v_add_u32 v{vT+2}, s{S_T2}, v{vT}
    v_add_u32 v{vT+3}, s{S_T0}, v{vT}
    s_lshl_b32 s{S_T0}, s{sI}, 7
    s_add_u32 s{S_T0}, s{S_T0}, {L_G}
    v_and_b32 v{vT+4}, 31, v{vLANE}
    v_lshlrev_b32 v{vT+5}, 2, v{vT+4}
    v_add_u32 v{vT+5}, s{S_T0}, v{vT+5}
    ds_read_b32 v{vT+5}, v{vT+5}
    v_mov_b32 v{O+9}, v{MX}''')
    for p in range(5):
        a(f'ds_write_b64 v{vT+1}, {vr(O+2*p,2)} offset:{p*512}')
    a(f'''s_lshl_b32 s{S_T0}, s{sI}, 10
    s_add_u32 s{S_T0}, s{S_T0}, {L_OA}
    s_lshr_b32 s{S_T1}, s{S_W}, 1
    s_lshl_b32 s{S_T1}, s{S_T1}, 4
    s_add_u32 s{S_T0}, s{S_T0}, s{S_T1}
    s_and_b32 s{S_T1}, s{S_W}, 1
    s_lshl_b32 s{S_T1}, s{S_T1}, 2
    s_add_u32 s{S_T0}, s{S_T0}, s{S_T1}
    v_lshrrev_b32 v{vT}, 5, v{vLANE}
    v_lshlrev_b32 v{vT}, 3, v{vT}
    v_lshl_add_u32 v{vT}, v{vT+4}, 5, v{vT}
    v_add_u32 v{vT}, s{S_T0}, v{vT}
    s_waitcnt lgkmcnt(0)
    s_barrier''')
    LM, OO = S, S+8
    for w in range(4):
        a(f'ds_read_b64 {vr(LM+2*w,2)}, v{vT+3} offset:{w*2560+2048}')
    for w in range(4):
        a(f'ds_read_b64 {vr(OO+2*w,2)}, v{vT+2} offset:{w*2560}')
    a(f'''s_waitcnt lgkmcnt(4)
    v_max3_f32 v{MX}, v{LM+1}, v{LM+3}, v{LM+5}
    v_max_f32 v{MX}, v{MX}, v{LM+7}''')
    for w in range(4): a(f'v_sub_f32 v{LM+2*w+1}, v{LM+2*w+1}, v{MX}')
    for w in range(4): a(f'v_exp_f32 v{LM+2*w+1}, v{LM+2*w+1}')
    a(f'''s_waitcnt lgkmcnt(0)
    v_mul_f32 v{LM}, v{LM}, v{LM+1}
    v_mul_f32 v{OO}, v{OO}, v{LM+1}
    v_mul_f32 v{OO+1}, v{OO+1}, v{LM+1}''')
    for w in range(1, 4):
        a(f'''v_fma_f32 v{LM}, v{LM+2*w}, v{LM+2*w+1}, v{LM}
        v_fma_f32 v{OO}, v{OO+2*w}, v{LM+2*w+1}, v{OO}
        v_fma_f32 v{OO+1}, v{OO+2*w+1}, v{LM+2*w+1}, v{OO+1}''')
    a(f'''v_rcp_f32 v{LM}, v{LM}
    s_add_u32 s{sI}, s{sI}, 1
    v_mul_f32 v{LM}, v{LM}, v{vT+5}
    v_mul_f32 v{OO}, v{OO}, v{LM}
    v_mul_f32 v{OO+1}, v{OO+1}, v{LM}
    v_cvt_pk_bf16_f32 v{OO}, v{OO}, v{OO+1}
    ds_write_b32 v{vT}, v{OO}
    s_cmp_lt_u32 s{sI}, s{sN}
    s_cbranch_scc1 L_p2
    s_branch L_p2_done''')
    for c in range(1, 8):
        a(f'L_ch{c}:')
        chunk_fin(a, c-1)
        if c < 7: chunk_load(a, c)
        a('s_branch L_ch_ret')
    a('L_p2_done:')

XF, QAC, PK, KX, KMF_, QF, VXF, VM, S0, S1, SM, MK, PB, PW = 0, 32, 48, 56, 88, 104, 120, 136, 140, 144, 148, 152, 160, 164
OT, AF_, SEL, RL = 0, 64, 192, 208
vKM, vVM, vOW, vOR, vOA, vPS, vPL, vOS, vG, vQR, vVX = range(196, 207)
sPREV, sCB = 71, 72
C_B = 128**-0.5*LOG2E

def p3_setup(a):
    a(f'''v_and_b32 v1, 15, v{vLANE}
    v_lshrrev_b32 v2, 4, v{vLANE}
    v_and_b32 v3, 31, v{vLANE}
    v_lshrrev_b32 v4, 5, v{vLANE}
    s_and_b32 s{sA}, s{S_W}, 1
    s_lshr_b32 s{sB}, s{S_W}, 1
    v_lshrrev_b32 v5, 2, v1
    v_lshlrev_b32 v5, 8, v5
    v_lshl_add_u32 v5, v2, 5, v5
    v_and_b32 v6, 1, v1
    v_lshl_add_u32 v{vKM}, v6, 7, v5
    s_lshl_b32 s{S_T0}, s{sB}, 11
    s_add_u32 s{S_T0}, s{S_T0}, 8
    v_add_u32 v{vVM}, s{S_T0}, v{vL16}
    s_lshl_b32 s{S_T0}, s{sB}, 12
    s_add_u32 s{S_T0}, s{S_T0}, 8192
    v_add_u32 v{vVX}, s{S_T0}, v{vVS}
    s_mul_i32 s{S_T0}, s{sA}, {16*OST}
    s_lshl_b32 s{S_T1}, s{sB}, 7
    s_add_u32 s{S_T0}, s{S_T0}, s{S_T1}
    s_add_u32 s{S_T0}, s{S_T0}, {L_OI}
    v_mul_u32_u24 v5, {OST}, v1
    v_lshl_add_u32 v5, v2, 4, v5
    v_add_u32 v{vOW}, s{S_T0}, v5
    v_mul_u32_u24 v5, {OST}, v3
    v_lshl_add_u32 v5, v4, 4, v5
    v_add_u32 v{vOR}, {L_OI}, v5
    v_lshlrev_b32 v5, 5, v3
    v_lshl_add_u32 v5, v4, 4, v5
    v_add_u32 v{vOA}, {L_OA}, v5
    s_lshl_b32 s{S_T0}, s{S_W}, 8
    v_lshlrev_b32 v5, 12, v4
    v_lshl_add_u32 v5, v3, 3, v5
    v_add_u32 v{vPS}, s{S_T0}, v5
    v_lshlrev_b32 v5, 15, v2
    v_lshl_add_u32 v5, v1, 4, v5
    v_add_u32 v{vPL}, s{S_T0}, v5
    v_lshlrev_b32 v5, 3, v2
    v_lshl_add_u32 v5, v1, 4, v5
    v_add_u32 v{vOS}, s{S_T0}, v5
    s_lshl_b32 s{S_T0}, s{sA}, 6
    s_add_u32 s{S_T0}, s{S_T0}, {L_G}
    v_lshlrev_b32 v5, 2, v1
    v_add_u32 v{vG}, s{S_T0}, v5
    s_lshl_b32 s{S_T0}, s{sA}, 12
    s_add_u32 s{S_T0}, s{S_T0}, {L_QX}
    v_add_u32 v{vQR}, s{S_T0}, v{vL16}
    s_lshl_b32 s{S_T0}, s{sA}, 4
    v_add_u32 v5, s{S_T0}, v1
    v_lshlrev_b32 v6, 2, v2
    v_sub_u32 v5, v5, v6
    v_mov_b32 v6, {fb(-1e9*128**0.5)}''')
    for t in range(2):
        for r in range(4):
            a(f'v_cmp_gt_i32 vcc, {16*t+r}, v5\ns_nop 1\nv_cndmask_b32 v{MK+4*t+r}, 0, v6, vcc')
    for r in range(12): a(f'v_mov_b32 v{PW+r}, 0')
    a(f'''v_mov_b32 v5, 0x3f80
    v_mov_b32 v6, 0x3f800000
    v_and_b32 v7, 1, v1
    v_cmp_eq_u32 vcc, 1, v7
    v_bfe_u32 v7, v1, 1, 2
    s_nop 0
    v_cndmask_b32 v5, v5, v6, vcc''')
    for r in range(4):
        a(f'v_cmp_eq_u32 vcc, {r}, v7\ns_nop 1\nv_cndmask_b32 v{SEL+r}, 0, v5, vcc')
    a(f's_mov_b32 s{sI}, 0\ns_mov_b32 s{sCB}, {fb(C_B)}')

def reduce_(a):
    a(f's_lshl_b32 s{sA}, s{sPREV}, 7\ns_add_u32 s{sA}, s{sA}, {PF}')
    poll(a, sA, 32)
    a(f'''s_lshl_b32 s{sA}, s{sPREV}, 20
    s_lshl_b32 s{S_T0}, s{sH}, 10
    s_add_u32 s{sA}, s{sA}, s{S_T0}
    s_add_u32 s{sA}, s{sA}, {PART}''')
    for j in range(8):
        a.vm(f'buffer_load_dwordx4 {vr(RL+4*j,4)}, v{vPL}, {WS}, s{sA} offen sc1', ('r', j))
        if j < 7: a(f's_add_u32 s{sA}, s{sA}, 131072')
    for j in range(8):
        a.wv(('r', j))
        a(mf16(SM, vr(SEL, 4), vr(RL+4*j, 4), '0' if j == 0 else vr(SM, 4)))
    a(f'''s_lshl_b32 s{sA}, s{sPREV}, 5
    s_add_u32 s{sA}, s{sA}, s{sH}
    s_lshl_b32 s{sA}, s{sA}, 10
    s_nop 4
    v_cvt_pk_bf16_f32 v{vT+5}, v{SM}, v{SM+1}
    v_cvt_pk_bf16_f32 v{vT+6}, v{SM+2}, v{SM+3}
    s_mov_b32 exec_hi, 0''')
    a.vm(f'buffer_store_dwordx2 {vr(vT+5,2)}, v{vOS}, {RO}, s{sA} offen')
    a('s_mov_b32 exec_hi, -1')

def p3_loop(a):
    a(f'''L_p3:
    s_waitcnt vmcnt(0) lgkmcnt(0)
    s_barrier''')
    a.vq = []; a.dq = []
    a(f'''s_lshl_b32 s{sA}, s{sSEG}, 5
    s_add_u32 s{sA}, s{sA}, s{sH}
    s_lshl_b32 s{sD}, s{sA}, 12
    s_add_u32 s{sD}, s{sD}, {KM}
    s_lshl_b32 s{sA}, s{sA}, 14
    s_add_u32 s{sA}, s{sA}, {KVX}
    s_add_u32 s{sB}, s{sA}, 4096''')
    def rd(ks):
        for tau in range(2):
            a.ds(f'ds_read_b128 {vr(XF+(ks&3)*8+tau*4,4)}, v{vL16} offset:{(ks*2+tau)*1024}', ks)
    rd(0); rd(1); rd(2)
    ld = []
    for t in range(2):
        for kk in range(4):
            ld.append((f'buffer_load_dwordx4 {vr(KX+(t*4+kk)*4,4)}, v{vL16}, {WS}, s{sA+t} offen offset:{kk*1024} sc1', 'kx'))
    for w2 in range(2):
        for T in range(2):
            for t in range(2):
                ld.append((f'buffer_load_dwordx2 {vr(VXF+(w2*2+T)*4+2*t,2)}, v{vVX}, {WS}, s{sA} offen offset:{w2*2048+T*1024+t*256} sc1', 'vx'))
    for ks in range(16):
        if ks+3 < 16: rd(ks+3)
        a.wl(ks)
        for tau in range(2):
            for u in range(2):
                d = QAC+(tau*2+u)*4
                a(mf16(d, ar(ks*8+u*4, 4), vr(XF+(ks & 3)*8+tau*4, 4), '0' if ks == 0 else vr(d, 4)))
            if tau == 0: a.vm(*ld[ks])
    a(f'''s_lshl_b32 s{S_T0}, s{S_W}, 10
    s_add_u32 s{S_T0}, s{S_T0}, {L_QX}
    v_add_u32 v{vT}, s{S_T0}, v{vL16}
    s_lshl_b32 s{S_T0}, s{sI}, 7
    v_add_u32 v{vT+4}, s{S_T0}, v{vG}
    ds_read_b32 v{vT+4}, v{vT+4}
    s_nop 1''')
    for tau in range(2):
        for r in range(4):
            a(f'v_cvt_pk_bf16_f32 v{PK+tau*4+r}, v{QAC+tau*8+r}, v{QAC+tau*8+4+r}')
        a(f'ds_write_b128 v{vT}, {vr(PK+tau*4,4)} offset:{tau*4096}')
    a.wl0()
    a('s_barrier')
    for kk in range(4):
        a.ds(f'ds_read_b128 {vr(QF+4*kk,4)}, v{vQR} offset:{kk*1024}', ('q', kk))
    a(f's_add_u32 s{sA}, s{sSEG}, 7\ns_cmp_ge_u32 s{sA}, 64\ns_cbranch_scc1 L_p3_nodma')
    vq = list(a.vq)
    x_dma(a, sA, sXB)
    a('L_p3_nodma:')
    a.vq = vq
    a.wv('kx')
    for kk in range(4):
        a.wl(('q', kk))
        for t in range(2):
            d = S0+4*t
            a(mf16(d, vr(KX+(t*4+kk)*4, 4), vr(QF+4*kk, 4), vr(MK+4*t, 4) if kk == 0 else vr(d, 4)))
    a(f's_cmp_eq_u32 s{sI}, 0\ns_cbranch_scc1 L_p3_nored')
    reduce_(a)
    a('L_p3_nored:')
    a(f's_lshl_b32 s{sA}, s{sH}, 6\ns_add_u32 s{sA}, s{sA}, s{sSEG}\ns_lshl_b32 s{sA}, s{sA}, 2\ns_add_u32 s{sA}, s{sA}, {KMF}')
    poll(a, sA, 1)
    for kk in range(4):
        for i in range(2):
            a.vm(f'buffer_load_dwordx2 {vr(KMF_+4*kk+2*i,2)}, v{vKM}, {WS}, s{sD} offen offset:{kk*1024+16*i} sc1', ('m', kk))
    for w2 in range(2):
        a.vm(f'buffer_load_dwordx2 {vr(VM+2*w2,2)}, v{vVM}, {WS}, s{sD} offen offset:{w2*1024} sc1', 'vm')
    X = vT
    a(f'''v_max3_f32 v{X}, v{S0}, v{S0+1}, v{S0+2}
    v_max3_f32 v{X}, v{X}, v{S0+3}, v{S1}
    v_max3_f32 v{X}, v{X}, v{S1+1}, v{S1+2}
    v_max_f32 v{X}, v{X}, v{S1+3}
    v_sub_f32 v{vT+4}, 1.0, v{vT+4}''')
    for kk in range(4):
        a.wv(('m', kk))
        a(mf16(SM, vr(KMF_+4*kk, 4), vr(QF+4*kk, 4), '0' if kk == 0 else vr(SM, 4)))
    a(f'''s_nop 7
    v_max3_f32 v{X}, v{X}, v{SM}, v{SM+1}
    v_max_f32 v{X+1}, v{X}, v{X}
    s_nop 1
    v_permlane16_swap_b32 v{X}, v{X+1}
    v_max_f32 v{X+2}, v{X}, v{X+1}
    v_max_f32 v{X}, v{X}, v{X+1}
    s_nop 1
    v_permlane32_swap_b32 v{X}, v{X+2}
    v_max_f32 v{X}, v{X}, v{X+2}
    v_mul_f32 v{X}, s{sCB}, v{X}''')
    for i in range(10): a(f'v_fma_f32 v{S0+i}, v{S0+i}, s{sCB}, -v{X}')
    for i in range(10): a(f'v_exp_f32 v{S0+i}, v{S0+i}')
    for r in range(4): a(f'v_cvt_pk_bf16_f32 v{PB+r}, v{S0+2*r}, v{S0+2*r+1}')
    a(f'v_cvt_pk_bf16_f32 v{PW+2}, v{SM}, v{SM+1}\nv_cvt_pk_bf16_f32 v{PW+9}, v{SM}, v{SM+1}')
    a.wv('vm')
    win = [PW+2, PW+8, PW, PW+6]
    sm = [f'v_add_f32 v{S0+i}, v{S0+i}, v{S0+5+i}' for i in range(5)] + [f'v_add_f32 v{S0}, v{S0}, v{S0+1}', f'v_add_f32 v{S0+2}, v{S0+2}, v{S0+3}',
          f'v_add_f32 v{S0}, v{S0}, v{S0+4}', f'v_add_f32 v{X}, v{S0}, v{S0+2}', f'v_add_f32 v{X+1}, v{S0}, v{S0+2}']
    for t in range(4):
        a(mf16(OT+4*t, vr(VXF+4*t, 4), vr(PB, 4), '0'))
        for x in sm[2*t:2*t+2]: a(x)
    for t in range(4):
        a(mf16(OT+4*t, vr(VM, 4), vr(win[t], 4), vr(OT+4*t, 4)))
        if t == 0: a(sm[8]); a(sm[9])
        if t == 1: a(f's_nop 0\nv_permlane16_swap_b32 v{X}, v{X+1}')
        if t == 2: a(f'v_add_f32 v{X+2}, v{X}, v{X+1}\nv_add_f32 v{X}, v{X}, v{X+1}')
    a(f'''s_nop 0
    v_permlane32_swap_b32 v{X}, v{X+2}
    v_add_f32 v{X}, v{X}, v{X+2}
    v_rcp_f32 v{X}, v{X}
    s_lshl_b32 s{S_T0}, s{sI}, 10
    v_add_u32 v{X+1}, s{S_T0}, v{vOA}
    v_mul_f32 v{X}, v{X}, v{vT+4}''')
    a.ds(f'ds_read_b128 {vr(AF_+32,4)}, v{X+1}')
    for w2 in range(2):
        b = OT+8*w2
        for r in range(8): a(f'v_mul_f32 v{b+r}, v{b+r}, v{X}')
        for r in range(4): a(f'v_cvt_pk_bf16_f32 v{PK+4*w2+r}, v{b+r}, v{b+4+r}')
        a.ds(f'ds_write_b128 v{vOW}, {vr(PK+4*w2,4)} offset:{w2*64}')
    a.wl0()
    a('s_barrier')
    for ks in range(8):
        a.ds(f'ds_read_b128 {vr(AF_+4*ks,4)}, v{vOR} offset:{ks*32}', ('o', ks))
    a(f'''s_lshl_b32 s{sA}, s{sSEG}, 5
    s_add_u32 s{sA}, s{sA}, s{sH}
    s_lshl_b32 s{sFL}, s{sA}, 2
    s_add_u32 s{sFL}, s{sFL}, {PF}
    s_lshl_b32 s{sA}, s{sA}, 15
    s_add_u32 s{sA}, s{sA}, {PART}
    s_add_u32 s{sB}, s{sA}, 8192
    s_add_u32 s{sC}, s{sA}, 16384
    s_add_u32 s{sD}, s{sA}, 24576''')
    for nu in range(4): a(mf32(16*nu, vr(AF_+32, 4), wo_reg(8, nu), '0'))
    for ks in range(8):
        a.wl(('o', ks))
        for nu in range(4): a(mf32(16*nu, vr(AF_+4*ks, 4), wo_reg(ks, nu), vr(16*nu, 16)))
    a('s_nop 7\ns_nop 3')
    for i in range(16):
        o = AF_+2*i
        a(f'v_cvt_pk_bf16_f32 v{o}, v{i}, v{16+i}\nv_cvt_pk_bf16_f32 v{o+1}, v{32+i}, v{48+i}')
        a(f'buffer_store_dwordx2 {vr(o,2)}, v{vPS}, {WS}, s{sA+(i>>2)} offen offset:{(i&3)*1024} sc0 sc1')
    a(f'''s_mov_b32 s{sPREV}, s{sSEG}
    s_add_u32 s{sI}, s{sI}, 1
    s_add_u32 s{sSEG}, s{sSEG}, 7
    s_waitcnt vmcnt(0)
    s_barrier''')
    flag(a, sFL, 0)
    a(f's_cmp_lt_u32 s{sSEG}, 64\ns_cbranch_scc1 L_p3')
    a.vq = []; a.dq = []

def rest(a, mode, prof):
    p2_setup(a)
    stamp(a, prof, 3)
    p2_loop(a)
    stamp(a, prof, 4)
    p3_setup(a)
    p3_loop(a)
    stamp(a, prof, 5)
    reduce_(a)
    stamp(a, prof, 6)
    a(f'''s_cmp_lg_u32 s{S_SLOT}, 32
    s_cbranch_scc1 L_w_end
    v_lshlrev_b32 v{vT}, 2, v{vLANE}
    v_mov_b32 v{vT+1}, 0
    buffer_store_dword v{vT+1}, v{vT}, s[{R_DBG}:{R_DBG+3}], 0 offen sc0 sc1
    L_w_end:
    s_waitcnt vmcnt(0)
    s_endpgm''')
```
